```python
import torch

def _softmax(x, axis=-1):
    return torch.softmax(x, dim=axis)

def _gelu(x):
    return torch.nn.functional.gelu(x, approximate='tanh')

def _silu(x):
    return torch.nn.functional.silu(x)

def _sigmoid(x):
    return torch.sigmoid(x)

def _layernorm(x, axis=-1, eps=1e-05):
    m = x.mean(dim=axis, keepdim=True)
    v = x.var(dim=axis, keepdim=True, unbiased=False)
    return (x - m) / torch.sqrt(v + eps)

def _scatter_add(tgt, idx, src, axis=0):
    return tgt.clone().index_add_(axis, idx, src)

def _segment_sum(src, seg, n):
    out = torch.zeros((n,) + src.shape[1:], dtype=src.dtype)
    return out.index_add_(0, seg, src)

def _pad(x, pw):
    flat = tuple((v for pair in reversed(pw) for v in pair))
    return torch.nn.functional.pad(x, flat)
kernel_name = 'parallel_sum__memory_aug_recurrent_mem_tr__swiglu_ffn__prompt'

def setup_inputs():

    _w = lambda a: (lambda t: t.to(torch.bfloat16) if t.is_floating_point() else t)(torch.as_tensor(a))

    def _A_setup():
        B, S, Dm = (1, 2048, 512)
        H, Dh = (32, 128)
        M, seg = (8, 32)
        seg = min(seg, S)
        S = S // seg * seg
        return {'x': _w((lambda *s: torch.randn(*s, dtype=torch.bfloat16) * 0.05)(B, S, Dm)), 'mem0': _w((lambda *s: torch.randn(*s, dtype=torch.bfloat16) * 1.6)(B, M, Dm)), 'Wq': _w((lambda *s: torch.randn(*s, dtype=torch.bfloat16) * 0.8)(Dm, H, Dh) * Dm ** (-0.5)), 'Wk': _w((lambda *s: torch.randn(*s, dtype=torch.bfloat16) * 0.8)(Dm, H, Dh) * Dm ** (-0.5)), 'Wv': _w((lambda *s: torch.randn(*s, dtype=torch.bfloat16) * 1.6)(Dm, H, Dh) * Dm ** (-0.5)), 'Wo': _w((lambda *s: torch.randn(*s, dtype=torch.bfloat16) * 1.6)(H, Dh, Dm) * (H * Dh) ** (-0.5)), 'seg_len': seg}
    _A_in = _A_setup()

    def _B_setup():
        B, S, D, F = (1, 2048, 512, 1792)
        return {'x': _w((lambda *s: torch.randn(*s, dtype=torch.bfloat16) * 0.05)(B, S, D)), 'w_gate': _w((lambda *s: torch.randn(*s, dtype=torch.bfloat16) * 0.05)(D, F)), 'w_up': _w((lambda *s: torch.randn(*s, dtype=torch.bfloat16) * 0.05)(D, F)), 'w_down': _w((lambda *s: torch.randn(*s, dtype=torch.bfloat16) * 0.05)(F, D))}
    _B_in = _B_setup()
    return {'A_x': _A_in['x'], 'A_mem0': _A_in['mem0'], 'A_Wq': _A_in['Wq'], 'A_Wk': _A_in['Wk'], 'A_Wv': _A_in['Wv'], 'A_Wo': _A_in['Wo'], 'A_seg_len': _A_in['seg_len'], 'B_x': _B_in['x'], 'B_w_gate': _B_in['w_gate'], 'B_w_up': _B_in['w_up'], 'B_w_down': _B_in['w_down']}

def reference(A_x, A_mem0, A_Wq, A_Wk, A_Wv, A_Wo, A_seg_len, B_x, B_w_gate, B_w_up, B_w_down):

    def _A_ref(x, mem0, Wq, Wk, Wv, Wo, seg_len):
        B, S, Dm = x.shape
        H, Dh = (Wq.shape[1], Wq.shape[2])
        M = mem0.shape[1]
        scale = Dh ** (-0.5)
        n_seg = S // seg_len
        L = M + seg_len
        idx = torch.arange(L)
        mask = (idx[:, None] < M) | (idx[:, None] >= idx[None, :])
        mem = mem0
        outs = []
        for s in range(n_seg):
            xs = x[:, s * seg_len:(s + 1) * seg_len, :].clone()
            h = torch.concatenate([mem, xs], axis=1)
            q = torch.einsum('btd,dhe->bhte', h, Wq)
            k = torch.einsum('btd,dhe->bhte', h, Wk)
            v = torch.einsum('btd,dhe->bhte', h, Wv)
            scores = torch.einsum('bhqe,bhke->bhqk', q, k) * scale
            scores = torch.where(mask[None, None], scores, -1000000000.0)
            p = _softmax(scores, axis=-1)
            o = torch.einsum('bhqk,bhke->bhqe', p, v)
            o = torch.einsum('bhte,hed->btd', o, Wo)
            mem = o[:, :M, :].clone()
            outs.append(o[:, M:, :])
        return torch.concatenate(outs, axis=1)

    def _B_ref(x, w_gate, w_up, w_down):
        g = _silu(x @ w_gate)
        u = x @ w_up
        return g * u @ w_down
    x = A_x
    xn = _layernorm(x, axis=-1)
    return x + _A_ref(xn, A_mem0, A_Wq, A_Wk, A_Wv, A_Wo, A_seg_len) + _B_ref(xn, B_w_gate, B_w_up, B_w_down)
```

```python
import re

def v(a, n=1): return f"v{a}" if n == 1 else f"v[{a}:{a+n-1}]"
def a(x, n=1): return f"a{x}" if n == 1 else f"a[{x}:{x+n-1}]"
def s(x, n=1): return f"s{x}" if n == 1 else f"s[{x}:{x+n-1}]"
def R(x, n=1):
    if x >= 256:
        return a(x-256, n)
    assert x+n <= 256
    return v(x, n)

_REG = re.compile(r'^(-|\|)?(?:abs\()?([vas])(?:(\d+)|\[(\d+):(\d+)\])\)?\|?$')
def parse_reg(tok):
    tok = tok.strip()
    if tok in ('vcc',): return [('s', 106), ('s', 107)]
    if tok == 'vcc_lo': return [('s', 106)]
    if tok == 'vcc_hi': return [('s', 107)]
    if tok == 'exec': return [('s', 126), ('s', 127)]
    if tok == 'exec_lo': return [('s', 126)]
    if tok == 'exec_hi': return [('s', 127)]
    if tok == 'm0': return [('s', 124)]
    m = _REG.match(tok)
    if not m: return []
    f = m.group(2)
    if m.group(3) is not None: lo = hi = int(m.group(3))
    else: lo, hi = int(m.group(4)), int(m.group(5))
    if f == 'a': return [('v', 256+i) for i in range(lo, hi+1)]
    return [(f, i) for i in range(lo, hi+1)]

def split_ops(sx):
    out, cur, d = [], '', 0
    for ch in sx:
        if ch in '[(': d += 1
        if ch in '])': d -= 1
        if ch == ',' and d == 0:
            out.append(cur.strip()); cur = ''
        else: cur += ch
    if cur.strip(): out.append(cur.strip())
    return out

TRANS = ('v_exp_f32', 'v_log_f32', 'v_rcp_f32', 'v_rsq_f32', 'v_sqrt_f32', 'v_sin_f32', 'v_cos_f32', 'v_rcp_iflag_f32')

class Ins:
    def __init__(self, text):
        self.text = text
        t = text.split(';')[0].strip()
        self.label = None
        self.mn = None
        if t.endswith(':'):
            self.label = t[:-1]; return
        if not t or t.startswith('.'): return
        sp = t.split(None, 1)
        self.mn = mn = sp[0]
        rest = sp[1] if len(sp) > 1 else ''
        ops = split_ops(rest)
        mods = ''
        if ops:
            parts = ops[-1].split(None, 1)
            ops[-1] = parts[0]
            mods = parts[1] if len(parts) > 1 else ''
        self.ops, self.mods = ops, mods
        regs = [parse_reg(o) for o in ops]
        self.rd, self.wr = set(), set()
        self.cls = None
        self.srcC = set(); self.srcAB = set(); self.D = ()
        self.passes = 0
        self.widestore = set()
        def allr(xs):
            r = set()
            for x in xs: r.update(x)
            return r
        if mn.startswith('v_mfma') or mn.startswith('v_smfmac'):
            self.cls = 'mfma'
            self.passes = 8 if '32x32' in mn else 4
            self.wr = set(regs[0]); self.D = tuple(regs[0])
            if mn.startswith('v_smfmac'):
                self.srcC = set(regs[0]); self.srcAB = allr(regs[1:4])
                self.Ctuple = tuple(regs[0])
            else:
                self.srcC = set(regs[3]); self.srcAB = allr(regs[1:3])
                self.Ctuple = tuple(regs[3])
            self.rd = self.srcC | self.srcAB
        elif mn.startswith('v_'):
            self.cls = 'valu'
            base = re.sub(r'_(e32|e64|dpp|sdwa)$', '', mn)
            self.base = base
            self.trans = base in TRANS
            self.dpp = mn.endswith('_dpp') or 'row_' in mods or 'quad_perm' in mods
            self.perml = base.startswith('v_permlane')
            self.rdlane = base in ('v_readlane_b32', 'v_readfirstlane_b32')
            if base == 'v_nop':
                pass
            elif self.perml:
                self.rd = allr(regs); self.wr = allr(regs)
            elif base in ('v_add_co_u32', 'v_sub_co_u32', 'v_subrev_co_u32', 'v_addc_co_u32', 'v_subb_co_u32', 'v_div_scale_f32', 'v_mad_u64_u32'):
                self.wr = allr(regs[:2]); self.rd = allr(regs[2:])
            else:
                self.wr = set(regs[0]); self.rd = allr(regs[1:])
                if base in ('v_fmac_f32', 'v_pk_fmac_f16', 'v_dot2c_f32_bf16', 'v_writelane_b32') or self.dpp:
                    self.rd |= set(regs[0])
                if base.startswith('v_cmpx'): raise Exception('avoid v_cmpx')
                if base == 'v_cndmask_b32' and len(ops) == 3: self.rd |= {('s', 106), ('s', 107)}
        elif mn.startswith('buffer_') or mn.startswith('global_'):
            self.cls = 'vmem'
            lds = (' lds' in ' ' + mods) or ('_lds_' in mn)
            self.ldsdma = lds
            if 'load' in mn and not lds:
                self.wr = set(regs[0]); self.rd = allr(regs[1:])
            elif 'atomic' in mn:
                self.rd = allr(regs)
                if 'sc0' in mods: self.wr = set(regs[0])
            else:
                self.rd = allr(regs)
                if 'store' in mn and ('x4' in mn or 'x3' in mn):
                    self.widestore = set(regs[0] if mn.startswith('buffer_') else regs[1])
            if lds: self.rd.add(('s', 124))
        elif mn.startswith('ds_'):
            self.cls = 'ds'
            if 'read' in mn or 'permute' in mn or 'swizzle' in mn:
                self.wr = set(regs[0]); self.rd = allr(regs[1:])
            else:
                self.rd = allr(regs)
        elif mn.startswith('s_'):
            self.cls = 'salu'
            if mn.startswith('s_cmp') or mn.startswith('s_cbranch') or mn in ('s_branch', 's_waitcnt', 's_barrier', 's_nop', 's_endpgm', 's_sleep', 's_setprio', 's_bitcmp1_b64', 's_bitcmp0_b64', 's_bitcmp1_b32', 's_bitcmp0_b32'):
                self.rd = allr(regs)
            else:
                if regs: self.wr = set(regs[0]); self.rd = allr(regs[1:])
                if 'saveexec' in mn: self.wr |= {('s', 126), ('s', 127)}
        else:
            raise Exception('unknown instr ' + text)
    def states(self):
        if self.mn == 's_nop': return int(self.ops[0], 0) + 1
        return 1

def need(p, c):
    n = 0
    if p.cls == 'valu':
        vw = {r for r in p.wr if r[0] == 'v'}
        sw = {r for r in p.wr if r[0] == 's'}
        if c.cls == 'mfma' and vw & c.rd: n = max(n, 2)
        if c.cls == 'valu':
            if vw & c.rd:
                if c.dpp or c.perml: n = max(n, 2)
                if c.rdlane: n = max(n, 1)
                if p.trans and not c.trans: n = max(n, 1)
                if p.trans and c.trans: n = max(n, 1)
            if sw & c.rd:
                n = max(n, 4 if c.base in ('v_readlane_b32', 'v_writelane_b32', 'v_div_fmas_f32') else 2)
        if c.cls in ('vmem', 'ds') :
            if sw & c.rd: n = max(n, 5)
            if p.trans and vw & c.rd: n = max(n, 1)
        if c.cls == 'salu' and sw & c.rd and p.rdlane: n = max(n, 1)
    if p.cls == 'mfma':
        D = p.wr
        big = {4: 8, 8: 12}[p.passes]
        if c.cls == 'mfma':
            if D & c.srcAB: n = max(n, big)
            if D & c.srcC:
                if c.Ctuple == p.D and c.passes == p.passes: pass
                else: n = max(n, {4: 6, 8: 10}[p.passes])
            elif D & c.wr: n = max(n, big)
        elif c.cls in ('valu', 'vmem', 'ds'):
            if D & (c.rd | c.wr): n = max(n, big)
        if c.cls == 'valu' and p.srcC & c.wr: n = max(n, {4: 3, 8: 7}[p.passes])
    if p.cls == 'salu' and ('s', 124) in p.wr:
        if c.cls == 'vmem' and c.ldsdma: n = max(n, 1)
    if p.cls == 'vmem' and p.widestore and c.cls in ('valu', 'mfma') and p.widestore & c.wr: n = max(n, 2)
    return n

WIN = 14
class Asm:
    def __init__(self):
        self.lines = []
        self.uid = 0
    def __call__(self, text):
        for l in text.split('\n'):
            l = l.strip()
            if l: self.lines.append(l)
    def label(self, name): self.lines.append(name + ':')
    def newlabel(self, p='L'):
        self.uid += 1
        return f".{p}{self.uid}"
    def finalize(self):
        ins = [Ins(l) for l in self.lines]
        entry = {}
        pads = {}
        for it in range(4):
            changed = False
            win = []
            pads = {}
            for idx, i in enumerate(ins):
                if i.label:
                    for (p, d) in entry.get(i.label, []):
                        win.append((p, d))
                    continue
                if i.mn is None: continue
                n = 0
                for (p, d) in win:
                    q = need(p, i)
                    if q > d: n = max(n, q - d)
                if n: pads[idx] = n
                st = n + i.states()
                win = [(p, d + st) for (p, d) in win if d + st < WIN]
                win.append((i, 0))
                if i.mn.startswith('s_cbranch') or i.mn == 's_branch':
                    tgt = i.ops[0]
                    cur = entry.setdefault(tgt, [])
                    for (p, d) in win:
                        if not any(p is p2 and d2 <= d for (p2, d2) in cur):
                            cur.append((p, d)); changed = True
                if i.mn in ('s_branch', 's_endpgm'): win = []
            if not changed: break
        out = []
        for idx, i in enumerate(ins):
            if idx in pads:
                n = pads[idx]
                while n > 0:
                    k = min(n, 16); out.append(f"s_nop {k-1}"); n -= k
            out.append(i.text if i.label or i.mn is None else '    ' + i.text)
        return '\n'.join(out) + '\n'
```

```python
from asmlib import *
import gen as G
from gen import *

MX, QT, KT, OX, SELL = 0, 8192, 10496, 12800, 14848
RS = 1056

def emit_rec(g):
    A = g.A
    opt = g.opt
    sH, sS, sMemRd, sMemWr, sMemRst, sPartWr, sPartRd, sKV, sKVM, sFM = range(62, 72)
    sRdy, sLo, sHi, sC, sT, sT2, sDb, sFKV, sMW0, sPf = 72, 74, 76, 78, 79, 80, 81, 82, 83, 84
    vIdx, vQKw, vTR, vPS, vPL, vMS, vWL, vMX, vOw, vFl = range(1, 11)
    vA, KX, QF, R2, aQ, aK = 16, 48, 80, 96, 112, 120
    aV, VX = R2, R2 + 8
    wait, mfma, smf, cvt = g.wait, g.mfma, g.smf, g.cvt

    A(f"s_mov_b32 {s(sH)}, {s(sSlot)}")
    A(f"s_add_u32 {s(sLB)}, {s(sLB)}, 32768")
    def bf(d, off, w): A(f"v_bfe_u32 {v(d)}, v0, {off}, {w}")
    bf(11, 4, 2); bf(12, 6, 2)
    A(f"v_and_b32 {v(vPL)}, 0x300, v0")
    A(f"v_lshl_or_b32 {v(vPL)}, v11, 6, {v(vPL)}")
    A(f"v_lshl_or_b32 {v(vPL)}, v12, 4, {v(vPL)}")
    bf(13, 8, 2)
    A("v_lshlrev_b32 v14, 4, v11")
    A("v_lshl_or_b32 v14, v13, 2, v14")
    A(f"v_mov_b32 v15, {HUGE}")
    A("v_cmp_eq_u32 vcc, 0, v12")
    A(f"v_cndmask_b32 {v(vMS)}, v15, v14, vcc")
    for i in range(4): A(f"v_mov_b32 {v(vA+i)}, -1")
    A(f"s_and_b32 s3, {s(sH)}, 7")
    A("s_lshl_b32 s3, s3, 10")
    A(f"s_lshr_b32 s4, {s(sH)}, 3")
    A("s_lshl_b32 s4, s4, 8")
    A("s_add_u32 s3, s3, s4")
    A(f"s_lshl_b32 s4, {s(sW)}, 6")
    A("s_add_u32 s3, s3, s4")
    A(f"s_add_u32 {s(sMW0)}, s3, {MEMR}")
    for i in range(4):
        A(f"s_add_u32 s3, {s(sMW0)}, {i*8192}")
        A(f"buffer_store_dword {v(vA)}, {v(vMS)}, {srd(SWS)}, s3 offen sc1")
    A(f"s_lshl_b32 s3, {s(sH)}, 13")
    A(f"s_lshl_b32 s4, {s(sW)}, 11")
    A("s_add_u32 s3, s3, s4")
    A(f"s_add_u32 {s(sPartRd)}, s3, {PART}")
    A(f"s_add_u32 s3, {s(sPartRd)}, 0x40000")
    for sl in (s(sPartRd), 's3'):
        for u in range(2):
            A(f"buffer_store_dwordx4 {v(vA,4)}, {v(vPL)}, {srd(SWS)}, {sl} offen offset:{u*1024} sc1")
    sk = A.newlabel('xm')
    A(f"s_cmp_lg_u32 {s(sW)}, 0")
    A(f"s_cbranch_scc1 {sk}")
    A("s_mov_b64 exec, 1")
    A(f"s_lshl_b32 s3, 1, {s(sXcc)}")
    A("v_mov_b32 v15, s3")
    A(f"buffer_atomic_or v15, off, {srd(SDBG)}, 0 offset:8 sc1")
    A("s_mov_b64 exec, -1")
    A.label(sk)
    vT, vq, vq2 = 20, 24, 28
    g.tr_addr(vT, 21)
    g.dma_voffs(vq, (2, 3, 0, 1), 8192, 128, 6, 21)
    g.dma_voffs(vq2, (0, 3, 1, 2), 1024, 16, 8, 21)
    A(f"v_add_u32 {v(vWL)}, {s(sLB)}, v0")
    A(f"s_lshl_b32 {s(sT)}, {s(sH)}, 8")
    A(f"s_lshl_b32 s3, {s(sW)}, 18")
    A(f"s_add_u32 {s(sT)}, {s(sT)}, s3")
    A(f"s_lshl_b32 {s(sT2)}, {s(sH)}, 17")
    def qkv_so(ls): return lambda: A(f"s_xor_b32 s3, {s(sT)}, {ls << 17}")
    def wo_so(u, t, j): return lambda: A(f"s_add_u32 s3, {s(sT2)}, {j*65536 + (2*u+t)*64}")
    units = []
    W = {}
    nxt = [128]
    def reg_unit(key, sr, vqq, so):
        W[key] = nxt[0]; units.append((sr, vqq, so, nxt[0])); nxt[0] += 16
    for ls in range(2, 8): reg_unit(('q', ls), SWQ, vq, qkv_so(ls))
    for ls in range(2, 8): reg_unit(('k', ls), SWK, vq, qkv_so(ls))
    for ls in range(8): reg_unit(('v', ls), SWV, vq, qkv_so(ls))
    for key in ((0, 0, 1), (0, 1, 1), (1, 0, 0), (1, 1, 0)): reg_unit(('o',) + key, SWO, vq2, wo_so(*key))
    assert nxt[0] == 512
    for (sr, ls) in ((SWQ, 0), (SWQ, 1), (SWK, 0), (SWK, 1)): units.append((sr, vq, qkv_so(ls), ('lds',)))
    for key in ((0, 0, 0), (0, 1, 0), (1, 0, 1), (1, 1, 1)): units.append((SWO, vq2, wo_so(*key), ('lds',)))
    W[('q', 0)], W[('q', 1)], W[('k', 0)], W[('k', 1)] = KX, KX + 16, QF, R2
    W[('o', 0, 0, 0)], W[('o', 0, 1, 0)], W[('o', 1, 0, 1)], W[('o', 1, 1, 1)] = vA, vA + 16, vA, vA + 16

    def after_issue():
        g.bar1_arrive(15, vm=32)
        A("v_mov_b32 v14, 0x4444")
        A("v_mov_b32 v15, 0xeeee")
        A("v_and_b32 v13, 0x80, v0")
        A("v_cmp_eq_u32 vcc, 0, v13")
        A(f"v_cndmask_b32 {v(vIdx)}, v15, v14, vcc")
        A(f"s_mov_b64 {s(sLo,2)}, vcc")
        A(f"s_not_b64 {s(sHi,2)}, vcc")
        bf(13, 8, 1)
        A(f"v_mul_u32_u24 {v(vQKw)}, {RS}, v13")
        bf(14, 9, 1)
        A(f"v_lshl_add_u32 {v(vQKw)}, v14, 5, {v(vQKw)}")
        A(f"v_lshl_add_u32 {v(vQKw)}, v12, 6, {v(vQKw)}")
        A(f"v_lshl_add_u32 {v(vQKw)}, v11, 3, {v(vQKw)}")
        A(f"s_lshl_b32 s3, {s(sW)}, 8")
        A(f"s_add_u32 s3, s3, {QT}")
        A(f"v_add_u32 {v(vQKw)}, s3, {v(vQKw)}")
        bf(15, 4, 1)
        A(f"v_mul_u32_u24 {v(vTR)}, {RS}, v15")
        A(f"v_lshl_add_u32 {v(vTR)}, v12, 3, {v(vTR)}")
        bf(15, 8, 2)
        A(f"v_lshl_add_u32 {v(vTR)}, v15, 6, {v(vTR)}")
        A(f"v_add_u32 {v(vTR)}, {QT}, {v(vTR)}")
        A(f"v_lshlrev_b32 {v(vPS)}, 14, v14")
        bf(15, 7, 1)
        A(f"v_lshl_or_b32 {v(vPS)}, v15, 13, {v(vPS)}")
        A(f"v_lshlrev_b32 {v(vOw)}, 3, v15")
        bf(15, 6, 1)
        A(f"v_lshl_or_b32 {v(vPS)}, v15, 12, {v(vPS)}")
        A(f"v_lshl_or_b32 {v(vPS)}, v13, 11, {v(vPS)}")
        A(f"v_lshl_or_b32 {v(vPS)}, v11, 4, {v(vPS)}")
        A("v_and_b32 v15, 0x70, v0")
        A(f"v_or_b32 {v(vOw)}, {v(vOw)}, v15")
        bf(15, 8, 2)
        A(f"v_lshl_or_b32 {v(vOw)}, v15, 7, {v(vOw)}")
        A(f"s_lshl_b32 s3, {s(sW)}, 9")
        A(f"s_add_u32 s3, s3, {OX}")
        A(f"v_add_u32 {v(vOw)}, s3, {v(vOw)}")
        A(f"s_lshl_b32 s3, {s(sW)}, 11")
        A(f"v_add_u32 {v(vMX)}, s3, v0")
        A(f"s_add_u32 {s(sMemRd)}, s3, {MEMR}")
        g.selector(32, 14)
        A(f"ds_write_b128 v0, {v(32,4)} offset:{SELL}")
        A(f"s_mov_b32 {s(sC)}, {hex(CSC)}")
        A(f"s_lshl_b32 s3, {s(sW)}, 16")
        A(f"s_lshl_b32 s4, {s(sH)}, 6")
        A("s_add_u32 s3, s3, s4")
        A(f"s_add_u32 {s(sPartWr)}, s3, {PART}")
        A(f"s_mul_i32 s3, {s(sH)}, {64*24576}")
        A(f"s_add_u32 {s(sKV)}, s3, {QKV}")
        A(f"s_lshl_b32 s3, {s(sH)}, 19")
        A(f"s_lshl_b32 s4, {s(sW)}, 10")
        A("s_add_u32 s3, s3, s4")
        A(f"s_add_u32 {s(sKVM)}, s3, {KVM}")
        A(f"s_lshl_b32 s3, {s(sH)}, 8")
        A(f"s_add_u32 {s(sFKV)}, s3, {FKV}")
        A(f"s_add_u32 s3, s3, {s(sW)}")
        A(f"s_add_u32 {s(sFM)}, s3, {FM}")
        A(f"s_mov_b32 {s(sS)}, 0")
        A(f"s_mov_b64 {s(sRdy,2)}, 0")
        A(f"s_lshl_b32 s3, {s(sH)}, 2")
        A(f"s_add_u32 s3, s3, {s(sW)}")
        A("s_lshl_b32 s3, s3, 12")
        A(f"s_add_u32 {s(sDb)}, s3, {DBGW}")
        wait(lgkm=0)
    g.load_units(units, vT, stage=(32, vWL), after_issue=after_issue)
    g.bar1_wait(11, 12)
    A("v_readlane_b32 s3, v11, 2")
    A(f"s_bcnt1_i32_b32 {s(sT)}, s3")
    A("v_and_b32 v11, 0x70, v0")
    A("v_lshlrev_b32 v11, 6, v11")
    A("v_and_b32 v12, 0x300, v0")
    A("v_or_b32 v11, v11, v12")
    bf(12, 7, 1)
    A("v_lshl_or_b32 v11, v12, 4, v11")
    A(f"s_lshl_b32 s3, {s(sW)}, 6")
    for ls in range(2):
        A(f"buffer_load_dwordx4 {v(vA+8+4*ls,4)}, v11, {srd(SM0)}, s3 offen offset:{ls*32}")
    A("s_mov_b32 s4, 0x05040100")
    A("s_mov_b32 s5, 0x07060302")
    wait(vm=0)
    for ls in range(2):
        i0 = vA + 8 + 4 * ls; o = vA + 4 * ls
        A(f"v_perm_b32 {v(o)}, {v(i0+2)}, {v(i0)}, s4")
        A(f"v_perm_b32 {v(o+1)}, {v(i0+2)}, {v(i0)}, s5")
        A(f"v_perm_b32 {v(o+2)}, {v(i0+3)}, {v(i0+1)}, s4")
        A(f"v_perm_b32 {v(o+3)}, {v(i0+3)}, {v(i0+1)}, s5")

    def kv_ready(sbit):
        ok = A.newlabel('kvok')
        A(f"s_bitcmp1_b64 {s(sRdy,2)}, {s(sbit)}")
        A(f"s_cbranch_scc1 {ok}")
        A("v_lshrrev_b32 v11, 2, v0")
        A("s_mov_b32 s4, 0x01010101")
        lp, ex = g.spin_begin()
        A(f"buffer_load_dword {v(vFl)}, v11, {srd(SWS)}, {s(sFKV)} offen sc1")
        wait(vm=0)
        A(f"v_cmp_eq_u32 {s(sRdy,2)}, s4, {v(vFl)}")
        A("s_nop 1")
        A(f"s_bitcmp1_b64 {s(sRdy,2)}, {s(sbit)}")
        A(f"s_cbranch_scc1 {ex}")
        g.spin_end(lp, ex)
        A.label(ok)

    def stage_p0():
        for i in range(8): A(f"ds_read_b128 {v(KX+4*i,4)}, {v(vWL)} offset:{i*1024}")
        for i in range(4): A(f"ds_read_b128 {v(QF+4*i,4)}, {v(vWL)} offset:{8192+i*1024}")
        for i in range(4): A(f"ds_read_b128 {v(R2+4*i,4)}, {v(vWL)} offset:{12288+i*1024}")
        for i in range(16): A(f"v_mov_b32 {v(aQ+i)}, 0")
    def mx_addrs():
        for k in range(1, 4): A(f"v_xor_b32 {v(vA+8*k)}, {2048*k}, {v(vMX)}")

    kv_ready(sS)
    stage_p0()
    mx_addrs()
    wait(lgkm=0)
    A(f"s_cmp_eq_u32 {s(sT)}, 1")
    if opt.get('slow'): A("s_branch .LokS")
    A("s_cbranch_scc0 .LokS")
    A("s_branch .LokF")

    def combine(acc, pk):
        for r in range(4): A(f"v_permlane32_swap_b32 {v(acc+r)}, {v(acc+4+r)}")
        for r in range(4): A(f"v_add_f32 {v(acc+r)}, {v(acc+r)}, {v(acc+4+r)}")
        cvt(pk, acc, acc + 1); cvt(pk + 1, acc + 2, acc + 3)

    def loop(tag, st):
        top = f".Ltop{tag}"
        A.label(top)
        lp, ex = g.spin_begin()
        for u in range(2):
            A(f"buffer_load_dwordx4 {v(vA+4*u,4)}, v0, {srd(SWS)}, {s(sMemRd)} offen offset:{u*1024} sc1")
        wait(vm=0)
        A(f"v_max3_u32 v11, {v(vA)}, {v(vA+1)}, {v(vA+2)}")
        A(f"v_max3_u32 v12, {v(vA+3)}, {v(vA+4)}, {v(vA+5)}")
        A(f"v_max3_u32 v11, v11, {v(vA+6)}, {v(vA+7)}")
        A("v_max_u32 v11, v11, v12")
        A("v_cmp_eq_u32 vcc, -1, v11")
        A(f"s_cbranch_vccz {ex}")
        g.spin_end(lp, ex)
        A.label(f".Lok{tag}")
        g.stamp(0, 11, sDb)
        A(f"ds_write_b128 {v(vMX)}, {v(vA,4)}")
        A(f"ds_write_b128 {v(vMX)}, {v(vA+4,4)} offset:1024")
        def S(m, acc, ls):
            for t in range(2): smf(acc + 4 * t, vA + 4 * ls, W[(m, ls)] + 8 * t, vIdx)
        S('q', aQ, 0); S('q', aQ, 1)
        wait(lgkm=0)
        A("s_barrier")
        for k in range(1, 4):
            A(f"ds_read_b128 {v(vA+8*k+4,4)}, {v(vA+8*k)} offset:1024")
            A(f"ds_read_b128 {v(vA+8*k,4)}, {v(vA+8*k)}")
        S('k', aK, 0)
        A(f"s_add_u32 s3, {s(sKV)}, 4096")
        for tau in range(2):
            for ks in range(4):
                A(f"buffer_load_dwordx4 {v(KX+16*tau+4*ks,4)}, v0, {srd(SWS)}, {s(sKV) if tau == 0 else 's3'} offen offset:{ks*1024} sc1")
        S('k', aK, 1)
        A(f"s_lshl_b32 s3, {s(sW)}, 11")
        A(f"s_add_u32 s3, s3, {s(sKV)}")
        A("s_add_u32 s3, s3, 8192")
        for t in range(2):
            A(f"buffer_load_dwordx4 {v(VX+4*t,4)}, v0, {srd(SWS)}, s3 offen offset:{t*1024} sc1")
        A(f"s_add_u32 s4, {s(sS)}, 2")
        A(f"s_lshl_b32 s3, {s(sW)}, 12")
        A(f"s_add_u32 s3, s3, {s(sKV)}")
        A(f"s_add_u32 s3, s3, {2*24576}")
        A(f"s_bitcmp1_b64 {s(sRdy,2)}, s4")
        A(f"s_cselect_b32 s3, s3, {HUGE}")
        A("s_cmp_lt_u32 s4, 64")
        A(f"s_cselect_b32 s3, s3, {HUGE}")
        A("v_lshlrev_b32 v11, 2, v0")
        A("v_lshrrev_b32 v12, 2, v0")
        A(f"buffer_load_dword {v(vFl)}, v11, {srd(SWS)}, s3 offen sc1")
        A(f"buffer_load_dword {v(vFl)}, v12, {srd(SWS)}, {s(sFKV)} offen sc1")
        for i in range(8): A(f"v_mov_b32 {v(aV+i)}, 0")
        order = [3, 2, 5, 4, 7, 6]
        for i, ls in enumerate(order):
            wait(lgkm=5 - i)
            S('q', aQ, ls)
        S('k', aK, 3)
        combine(aQ, 12)
        A(f"ds_write_b64 {v(vQKw)}, {v(12,2)}")
        S('k', aK, 2); S('k', aK, 5)
        wait(lgkm=0)
        A("s_barrier")
        for ks in range(4):
            for z in range(2):
                A(f"ds_read_b64_tr_b16 {v(QF+4*ks+2*z,2)}, {v(vTR)} offset:{ks*256+z*32}")
        S('k', aK, 4); S('k', aK, 7); S('k', aK, 6)
        wait(vm=8, lgkm=0)
        for ks in range(2): mfma(aQ, KX + 4 * ks, QF + 4 * ks, None if ks == 0 else aQ)
        combine(aK, 12)
        A(f"ds_write_b64 {v(vQKw)}, {v(12,2)} offset:{KT-QT}")
        for ks in range(2, 4): mfma(aQ, KX + 4 * ks, QF + 4 * ks, aQ)
        wait(vm=4)
        for ks in range(2): mfma(aQ + 4, KX + 16 + 4 * ks, QF + 4 * ks, None if ks == 0 else aQ + 4)
        wait(lgkm=0)
        A("s_barrier")
        KF = KX
        for ks in range(4):
            for z in range(2):
                A(f"ds_read_b64_tr_b16 {v(KF+4*ks+2*z,2)}, {v(vTR)} offset:{KT-QT+ks*256+z*32}")
        for ks in range(2, 4): mfma(aQ + 4, KX + 16 + 4 * ks, QF + 4 * ks, aQ + 4)
        S('v', aV, 0)
        A(f"v_max3_f32 v11, {v(aQ)}, {v(aQ+1)}, {v(aQ+2)}")
        A(f"v_max3_f32 v12, {v(aQ+3)}, {v(aQ+4)}, {v(aQ+5)}")
        A(f"v_max3_f32 v11, v11, {v(aQ+6)}, {v(aQ+7)}")
        A("v_max_f32 v11, v11, v12")
        PX, OX0, OX1, SM_ = KX + 16, KX + 20, KX + 24, KX + 28
        wait(lgkm=0)
        for ks in range(4): mfma(SM_, KF + 4 * ks, QF + 4 * ks, None if ks == 0 else SM_)
        done = A.newlabel('km')
        for w in range(4):
            nx = A.newlabel('km')
            if w < 3:
                A(f"s_cmp_lg_u32 {s(sW)}, {w}")
                A(f"s_cbranch_scc1 {nx}")
            A(f"buffer_store_dwordx4 {v(KF+4*w,4)}, v0, {srd(SWS)}, {s(sKVM)} offen sc1")
            if w < 3:
                A(f"s_branch {done}")
                A.label(nx)
        A.label(done)
        def xred(r, t, op, sws):
            for sw in sws:
                A(f"v_mov_b32 {v(t)}, {v(r)}")
                A(f"v_permlane{sw}_swap_b32 {v(t)}, {v(r)}")
                A(f"{op} {v(r)}, {v(r)}, {v(t)}")
        xred(11, 12, 'v_max_f32', ('16', '32'))
        S('v', aV, 1)
        A(f"v_mul_f32 v11, {s(sC)}, v11")
        for i in range(8): A(f"v_fma_f32 {v(aQ+i)}, {v(aQ+i)}, {s(sC)}, -v11")
        S('v', aV, 3)
        for i in range(8): A(f"v_exp_f32 {v(aQ+i)}, {v(aQ+i)}")
        S('v', aV, 2)
        for i in range(4): cvt(PX + i, aQ + 2 * i, aQ + 2 * i + 1)
        A(f"v_max3_f32 v13, {v(SM_)}, {v(SM_+1)}, {v(SM_+2)}")
        A(f"v_max_f32 v13, v13, {v(SM_+3)}")
        wait(vm=3)
        mfma(OX0, VX, PX, None); mfma(OX1, VX + 4, PX, None)
        xred(13, 14, 'v_max_f32', ('16',))
        A(f"v_add_f32 v12, {v(aQ)}, {v(aQ+1)}")
        for i in range(2, 8): A(f"v_add_f32 v12, v12, {v(aQ+i)}")
        S('v', aV, 5)
        A(f"v_mul_f32 v13, {s(sC)}, v13")
        A("v_max_f32 v13, v13, v11")
        for i in range(4): A(f"v_fma_f32 {v(SM_+i)}, {v(SM_+i)}, {s(sC)}, -v13")
        A("v_sub_f32 v11, v11, v13")
        for i in range(4): A(f"v_exp_f32 {v(SM_+i)}, {v(SM_+i)}")
        A("v_exp_f32 v11, v11")
        S('v', aV, 4)
        PM, OM = aQ, aQ + 4
        for i in range(4): A(f"v_mov_b32 {v(PM+i)}, 0")
        A(f"s_mov_b64 exec, {s(sLo,2)}")
        cvt(PM, SM_, SM_ + 1); cvt(PM + 1, SM_ + 2, SM_ + 3)
        A(f"s_mov_b64 exec, {s(sHi,2)}")
        cvt(PM + 2, SM_, SM_ + 1); cvt(PM + 3, SM_ + 2, SM_ + 3)
        for i in range(4): A(f"v_mov_b32 {v(OX0+i)}, {v(OX1+i)}")
        A("s_mov_b64 exec, -1")
        S('v', aV, 7)
        A(f"v_add_f32 v13, {v(SM_)}, {v(SM_+1)}")
        A(f"v_add_f32 v14, {v(SM_+2)}, {v(SM_+3)}")
        A("v_add_f32 v13, v13, v14")
        A("v_mul_f32 v13, 0.5, v13")
        A("v_fma_f32 v12, v12, v11, v13")
        S('v', aV, 6)
        xred(12, 13, 'v_add_f32', ('16', '32'))
        for i in range(8): A(f"ds_read_b128 {v(vA+4*i,4)}, {v(vWL)} offset:{16384+i*1024}")
        A("v_rcp_f32 v12, v12")
        VM = aK
        for i in range(4): cvt(VM + i, aV + 2 * i, aV + 2 * i + 1)
        mfma(OM, VM, PM, None)
        A("v_mul_f32 v11, v11, v12")
        A(f"s_add_u32 s3, {s(sKVM)}, 4096")
        A(f"buffer_store_dwordx4 {v(VM,4)}, v0, {srd(SWS)}, s3 offen sc1")
        A(f"s_cmp_eq_u32 {s(sS)}, 63")
        A("s_cbranch_scc1 .Lrecend")
        for i in range(4): A(f"v_mul_f32 {v(OX0+i)}, {v(OX0+i)}, v11")
        for i in range(4): A(f"v_fma_f32 {v(OM+i)}, {v(OM+i)}, v12, {v(OX0+i)}")
        cvt(14, OM, OM + 1); cvt(15, OM + 2, OM + 3)
        A(f"ds_write_b64 {v(vOw)}, {v(14,2)}")
        for i in range(32): A(f"v_mov_b32 {v(QF+i)}, 0")
        wait(lgkm=0)
        A("s_barrier")
        OA = KX
        for j in range(2): A(f"ds_read_b128 {v(OA+4*j,4)}, v0 offset:{OX+j*1024}")
        g.stamp(1, 11, sDb)
        def acc(u, t, z): return (QF if u == 0 else R2) + 8 * z + 4 * t
        def O(u, t, z, j): smf(acc(u, t, z), OA + 4 * j, W[('o', u, t, j)] + 8 * z, vIdx)
        def refill(z):
            for t in range(2):
                for hh in range(2):
                    A(f"ds_read_b128 {v(vA+16*t+8*z+4*hh,4)}, {v(vWL)} offset:{24576+t*4096+z*2048+hh*1024}")
        PK = KX + 8
        wait(lgkm=1)
        O(0, 0, 0, 0); O(0, 1, 0, 0)
        wait(lgkm=0)
        refill(0)
        O(0, 0, 0, 1); O(0, 1, 0, 1)
        O(0, 0, 1, 0); O(0, 1, 1, 0)
        refill(1)
        combine(acc(0, 0, 0), PK)
        O(0, 0, 1, 1); O(0, 1, 1, 1)
        O(1, 0, 0, 0); O(1, 1, 0, 0)
        combine(acc(0, 0, 1), PK + 2)
        A(f"buffer_store_dwordx4 {v(PK,4)}, {v(vPS)}, {srd(SWS)}, {s(sPartWr)} offen{st}")
        wait(lgkm=4)
        O(1, 0, 0, 1); O(1, 1, 0, 1)
        O(1, 0, 1, 0); O(1, 1, 1, 0)
        combine(acc(1, 0, 0), PK + 4)
        wait(lgkm=0)
        O(1, 0, 1, 1); O(1, 1, 1, 1)
        A(f"s_add_u32 s3, {s(sPartWr)}, 32768")
        combine(acc(1, 0, 1), PK + 6)
        A(f"buffer_store_dwordx4 {v(PK+4,4)}, {v(vPS)}, {srd(SWS)}, s3 offen{st}")
        g.stamp(2, 11, sDb)
        RD, RA, SEL, NEG = vA + 8, vA + 16, vA + 20, vA + 24
        A(f"ds_read_b128 {v(SEL,4)}, v0 offset:{SELL}")
        for i in range(4): A(f"v_mov_b32 {v(NEG+i)}, -1")
        A(f"s_and_b32 s3, {s(sS)}, 3")
        A("s_lshl_b32 s3, s3, 13")
        A(f"s_add_u32 {s(sMemRst)}, {s(sMW0)}, s3")
        A(f"s_add_u32 {s(sS)}, {s(sS)}, 1")
        A(f"s_and_b32 s3, {s(sS)}, 3")
        A("s_lshl_b32 s3, s3, 13")
        A(f"s_add_u32 {s(sMemWr)}, {s(sMW0)}, s3")
        A(f"s_andn2_b32 {s(sMemRd)}, {s(sMemRd)}, 0x6000")
        A(f"s_or_b32 {s(sMemRd)}, {s(sMemRd)}, s3")
        stage_p0()
        lp, ex = g.spin_begin()
        for u in range(2):
            A(f"buffer_load_dwordx4 {v(RD+4*u,4)}, {v(vPL)}, {srd(SWS)}, {s(sPartRd)} offen offset:{u*1024} sc1")
        wait(vm=1, lgkm=0)
        mfma(RA, RD, SEL, None)
        wait(vm=0)
        mfma(RA, RD + 4, SEL, RA)
        A(f"v_add_f32 v11, {v(RA)}, {v(RA+1)}")
        A(f"v_add_f32 v12, {v(RA+2)}, {v(RA+3)}")
        A("v_add_f32 v11, v11, v12")
        A("v_cmp_u_f32 vcc, v11, v11")
        A("v_mov_b32_dpp v12, v11 row_ror:4 row_mask:0xf bank_mask:0xf")
        A(f"s_cbranch_vccz {ex}")
        g.spin_end(lp, ex)
        cvt(11, 11, 12)
        A(f"buffer_store_dword v11, {v(vMS)}, {srd(SWS)}, {s(sMemWr)} offen{st}")
        g.stamp(3, 12, sDb)
        for u in range(2):
            A(f"buffer_store_dwordx4 {v(NEG,4)}, {v(vPL)}, {srd(SWS)}, {s(sPartRd)} offen offset:{u*1024}{st}")
        A(f"buffer_store_dword {v(NEG)}, {v(vMS)}, {srd(SWS)}, {s(sMemRst)} offen{st}")
        A("v_mov_b32 v12, 1")
        A("s_mov_b64 exec, 1")
        A(f"buffer_store_byte v12, off, {srd(SWS)}, {s(sFM)} sc1")
        A("s_mov_b64 exec, -1")
        A("s_mov_b32 s4, 0x01010101")
        A(f"v_cmp_eq_u32 {s(sRdy,2)}, s4, {v(vFl)}")
        A(f"s_xor_b32 {s(sPartWr)}, {s(sPartWr)}, 0x40000")
        A(f"s_xor_b32 {s(sPartRd)}, {s(sPartRd)}, 0x40000")
        A(f"s_add_u32 {s(sKV)}, {s(sKV)}, 24576")
        A(f"s_add_u32 {s(sKVM)}, {s(sKVM)}, 8192")
        A(f"s_add_u32 {s(sFM)}, {s(sFM)}, 4")
        A(f"s_add_u32 {s(sDb)}, {s(sDb)}, 64")
        mx_addrs()
        kv_ready(sS)
        A(f"s_branch {top}")

    loop('F', '')
    loop('S', ' sc1')
    A.label('.Lrecend')
    wait(vm=0)
    A("v_mov_b32 v12, 1")
    A("s_mov_b64 exec, 1")
    A(f"buffer_store_byte v12, off, {srd(SWS)}, {s(sFM)} sc1")
    A("s_branch .Lend")
```

```python
import sys, os
sys.path.insert(0, os.path.dirname(os.path.abspath(__file__)))
from asmlib import *

NAME = 'parallel_sum__memory_aug_recurrent_mem_tr__swiglu_ffn__prompt'

XN   = 0x0
QKV  = 0x200000
KVM  = 0x3200000
PB   = 0x4200000
NP   = 46
FLG  = 0xA000000
FKV  = FLG
FM   = FLG + 0x2000
FP   = FLG + 0x10000
MEMR = 0xA100000
PART = 0xA200000
DBGW = 0xA400000
WSZ  = 0xA800000
HUGE = 0x7ff00000

SX, SM0, SWQ, SWK, SWV, SWO, SWG, SWU, SWD, SOUT, SDBG, SWS = [8 + 4 * i for i in range(12)]
def srd(b): return s(b, 4)
sW, sSlot, sDead, sCnt, sXcc, sLB = 56, 57, 58, 59, 60, 61
LDS_BYTES = 163840
SPIN = 40000

LOG2E = 1.4426950408889634
import struct
def f2u(x): return struct.unpack('<I', struct.pack('<f', x))[0]
CSC = f2u((128 ** -0.5) * LOG2E)

class Gen:
    def __init__(self, opt):
        self.A = Asm()
        self.opt = opt

    def mfma(self, D, Aop, Bop, C):
        c = '0' if C is None else R(C, 4)
        self.A(f"v_mfma_f32_16x16x32_bf16 {R(D,4)}, {R(Aop,4)}, {R(Bop,4)}, {c}")
    def smf(self, D, Aop, Bop, idx):
        self.A(f"v_smfmac_f32_16x16x64_bf16 {R(D,4)}, {R(Aop,4)}, {R(Bop,8)}, {v(idx)}")
    def cvt(self, d, x, y):
        self.A(f"v_cvt_pk_bf16_f32 {v(d)}, {v(x)}, {v(y)}")
    def wait(self, vm=None, lgkm=None):
        p = []
        if vm is not None: p.append(f"vmcnt({vm})")
        if lgkm is not None: p.append(f"lgkmcnt({lgkm})")
        self.A("s_waitcnt " + " ".join(p))
    def spin_begin(self):
        A = self.A
        lp, ex = A.newlabel('spin'), A.newlabel('spinx')
        A(f"s_mov_b32 {s(sCnt)}, {SPIN}")
        A(f"s_cmp_lg_u32 {s(sDead)}, 0")
        A(f"s_cselect_b32 {s(sCnt)}, 1, {s(sCnt)}")
        A.label(lp)
        return lp, ex
    def spin_end(self, lp, ex):
        A = self.A
        A(f"s_sub_u32 {s(sCnt)}, {s(sCnt)}, 1")
        A(f"s_cmp_lg_u32 {s(sCnt)}, 0")
        A(f"s_cbranch_scc1 {lp}")
        A(f"s_mov_b32 {s(sDead)}, 1")
        A.label(ex)
    def stamp(self, idx, vt, ssoff):
        if not self.opt.get('stamps'): return
        A = self.A
        A("s_memtime s[4:5]")
        A("s_waitcnt lgkmcnt(0)")
        A(f"v_mov_b32 {v(vt)}, s4")
        A("s_mov_b64 exec, 1")
        A(f"buffer_store_dword {v(vt)}, off, {srd(SWS)}, {s(ssoff)} offset:{idx*4}")
        A("s_mov_b64 exec, -1")

    def prologue(self):
        A = self.A
        offs = [0, 8, 16, 24, 32, 40, 64, 72, 80, 88, 96, 104]
        sizes = [2097152, 8192, 4194304, 4194304, 4194304, 4194304, 1835008, 1835008, 1835008, 2097152, 256, WSZ]
        for i, o in enumerate(offs):
            A(f"s_load_dwordx2 {s(8+4*i,2)}, s[0:1], {o}")
        A("v_lshrrev_b32 v1, 6, v0")
        A("v_and_b32 v2, 63, v0")
        A(f"s_getreg_b32 {s(sXcc)}, hwreg(HW_REG_XCC_ID)")
        A(f"v_readfirstlane_b32 {s(sW)}, v1")
        A(f"s_and_b32 {s(sXcc)}, {s(sXcc)}, 7")
        for i, z in enumerate(sizes):
            A(f"s_mov_b32 {s(10+4*i)}, {z}")
            A(f"s_mov_b32 {s(11+4*i)}, 0x20000")
        A(f"s_mov_b32 {s(sDead)}, 0")
        A(f"s_lshl_b32 {s(sLB)}, {s(sW)}, 15")
        A("v_lshlrev_b32 v0, 4, v2")
        A("v_mov_b32 v3, 0x7ff0")
        self.wait(lgkm=0)
        skip = A.newlabel('tk')
        A(f"s_cmp_lg_u32 {s(sW)}, 0")
        A(f"s_cbranch_scc1 {skip}")
        A("s_mov_b64 exec, 1")
        A(f"s_mov_b32 s3, {s(sXcc)}")
        A("s_mov_b32 s4, 8")
        lp, got = A.newlabel('tkl'), A.newlabel('tkg')
        A.label(lp)
        A("v_mov_b32 v4, 1")
        A("s_lshl_b32 s5, s3, 5")
        A(f"buffer_atomic_add v4, off, {srd(SDBG)}, s5 sc0 sc1")
        self.wait(vm=0)
        A("v_readfirstlane_b32 s6, v4")
        A("s_add_u32 s7, s5, s6")
        A("s_cmp_lt_u32 s6, 32")
        A(f"s_cbranch_scc1 {got}")
        A("s_add_u32 s3, s3, 1")
        A("s_and_b32 s3, s3, 7")
        A("s_sub_u32 s4, s4, 1")
        A("s_cmp_lg_u32 s4, 0")
        A(f"s_cbranch_scc1 {lp}")
        A("s_mov_b32 s7, -1")
        A.label(got)
        A("v_mov_b32 v4, s7")
        A("ds_write_b32 v3, v4")
        A("s_mov_b64 exec, -1")
        self.wait(lgkm=0)
        A.label(skip)
        A("s_barrier")
        A("ds_read_b32 v4, v3")
        self.wait(lgkm=0)
        A(f"v_readfirstlane_b32 {s(sSlot)}, v4")
        A(f"s_cmp_eq_u32 {s(sSlot)}, -1")
        A("s_cbranch_scc1 .Lend")
        A(f"s_cmp_lt_u32 {s(sSlot)}, 32")
        A("s_cbranch_scc1 .Lrec")

    def reset_flags(self, vz, vt):
        A = self.A
        sk = A.newlabel('rf')
        A(f"s_cmp_lg_u32 {s(sW)}, 0")
        A(f"s_cbranch_scc1 {sk}")
        A(f"v_mov_b32 {v(vz)}, 0")
        A(f"v_mov_b32 {v(vz+1)}, 0")
        A(f"v_lshrrev_b32 {v(vt)}, 1, v0")
        A(f"s_lshl_b32 s3, {s(sSlot)}, 9")
        A(f"s_add_u32 s3, s3, {FLG}")
        A(f"buffer_store_dwordx2 {v(vz,2)}, {v(vt)}, {srd(SWS)}, s3 offen sc1")
        A.label(sk)

    def bar1_arrive(self, vt, vm=0):
        A = self.A
        self.wait(vm=vm)
        A("s_barrier")
        sk = A.newlabel('ba')
        A(f"s_cmp_lg_u32 {s(sW)}, 0")
        A(f"s_cbranch_scc1 {sk}")
        A("s_mov_b64 exec, 1")
        A(f"v_mov_b32 {v(vt)}, 1")
        A(f"s_and_b32 s3, {s(sSlot)}, 0xe0")
        A(f"buffer_atomic_add {v(vt)}, off, {srd(SDBG)}, s3 offset:4 sc1")
        A("s_mov_b64 exec, -1")
        A.label(sk)

    def bar1_wait(self, vt, va):
        A = self.A
        A(f"v_lshrrev_b32 {v(va)}, 2, v0")
        A("s_mov_b32 s6, 0x02020202")
        A("s_mov_b32 s7, 0x02020202")
        lp, ex = self.spin_begin()
        A(f"buffer_load_dword {v(vt)}, {v(va)}, {srd(SDBG)}, 0 offen sc1")
        self.wait(vm=0)
        A(f"v_cmp_eq_u32 vcc, 32, {v(vt)}")
        A("s_and_b64 s[4:5], vcc, s[6:7]")
        A("s_cmp_eq_u64 s[4:5], s[6:7]")
        A(f"s_cbranch_scc1 {ex}")
        self.spin_end(lp, ex)

    def tr_addr(self, vt, tmp):
        A = self.A
        A(f"v_and_b32 {v(vt)}, 0xf0, v0")
        A(f"v_and_b32 {v(tmp)}, 0x300, v0")
        A(f"v_lshlrev_b32 {v(tmp)}, 1, {v(tmp)}")
        A(f"v_add3_u32 {v(vt)}, {v(vt)}, {v(tmp)}, {s(sLB)}")

    def dma_voffs(self, vq, rowmap, stride, qrows, swave_shift, tmp):
        A = self.A
        first = True
        for sb in range(4):
            db = rowmap[sb]
            A(f"v_bfe_u32 {v(tmp)}, v0, {6+sb}, 1")
            if first:
                A(f"v_lshlrev_b32 {v(vq)}, {db}, {v(tmp)}"); first = False
            else:
                A(f"v_lshl_or_b32 {v(vq)}, {v(tmp)}, {db}, {v(vq)}")
        A(f"s_mov_b32 s3, {stride}")
        A(f"v_mul_lo_u32 {v(vq)}, {v(vq)}, s3")
        A(f"v_and_b32 {v(tmp)}, 0x30, v0")
        A(f"s_lshl_b32 s3, {s(sW)}, {swave_shift}")
        A(f"v_add3_u32 {v(vq)}, {v(vq)}, {v(tmp)}, s3")
        for q in range(1, 4):
            A(f"v_add_u32 {v(vq+q)}, {q*(qrows*stride-1024)}, {v(vq)}")

    def load_units(self, units, vt, stage=None, after_issue=None):
        A = self.A
        n = len(units)
        def issue(k):
            sr, vq, so, dst = units[k]
            slot = k % 8
            A(f"s_add_u32 m0, {s(sLB)}, {slot*4096}")
            so()
            for q in range(4):
                A(f"buffer_load_dwordx4 {v(vq+q)}, {srd(sr)}, s3 offen offset:{q*1024} lds")
        for k in range(min(8, n)): issue(k)
        if after_issue: after_issue()
        for k in range(n):
            sr, vq, so, dst = units[k]
            slot = k % 8
            rem = min(7, n - 1 - k)
            self.wait(vm=4 * rem)
            base = stage[0] if isinstance(dst, tuple) else dst
            for t in range(2):
                for hh in range(2):
                    for y in range(2):
                        A(f"ds_read_b64_tr_b16 {R(base+8*t+4*hh+2*y,2)}, {v(vt)} offset:{slot*4096+hh*2048+y*256+t*8}")
            if isinstance(dst, tuple):
                self.wait(lgkm=0)
                for i in range(4):
                    A(f"ds_write_b128 {v(stage[1])}, {R(base+4*i,4)} offset:{slot*4096+i*1024}")
            if k + 8 < n:
                self.wait(lgkm=0)
                issue(k + 8)
        self.wait(lgkm=0)

    def selector(self, vs, tmp):
        A = self.A
        A(f"v_bfe_u32 {v(tmp)}, v0, 4, 1")
        A(f"v_lshlrev_b32 {v(tmp)}, 4, {v(tmp)}")
        A(f"v_mov_b32 {v(tmp+1)}, 0x3f80")
        A(f"v_lshlrev_b32 {v(tmp+1)}, {v(tmp)}, {v(tmp+1)}")
        A(f"v_bfe_u32 {v(tmp)}, v0, 5, 2")
        for i in range(4):
            A(f"v_cmp_eq_u32 vcc, {i}, {v(tmp)}")
            A(f"v_cndmask_b32 {v(vs+i)}, 0, {v(tmp+1)}, vcc")

    def ln(self):
        A = self.A
        sB = 62
        sk = A.newlabel('ln')
        A(f"s_cmp_ge_u32 {s(sB)}, 128")
        A(f"s_cbranch_scc1 {sk}")
        A(f"s_lshl_b32 s3, {s(sB)}, 2")
        A(f"s_add_u32 s3, s3, {s(sW)}")
        A("s_lshl_b32 s4, s3, 12")
        A("v_and_b32 v4, 0xf0, v0")
        A("v_and_b32 v5, 0x300, v0")
        A("v_lshl_or_b32 v4, v5, 2, v4")
        for u in range(4):
            A(f"buffer_load_dwordx4 {v(16+4*u,4)}, v4, {srd(SX)}, s4 offen offset:{u*256}")
        A("v_bfe_u32 v6, v0, 6, 2")
        A("v_lshlrev_b32 v6, 11, v6")
        A("v_bfe_u32 v7, v0, 4, 2")
        A("v_lshl_or_b32 v6, v7, 8, v6")
        A("v_lshrrev_b32 v7, 4, v5")
        A("v_or_b32 v6, v6, v7")
        A("s_lshr_b32 s5, s3, 3")
        A("s_lshl_b32 s5, s5, 15")
        A("s_and_b32 s6, s3, 1")
        A("s_lshl_b32 s6, s6, 10")
        A("s_add_u32 s5, s5, s6")
        A("s_bfe_u32 s6, s3, 0x20001")
        A("s_lshl_b32 s6, s6, 6")
        A("s_add_u32 s5, s5, s6")
        if XN: A(f"s_add_u32 s5, s5, {XN}")
        A("s_mov_b32 s6, 0xffff0000")
        self.wait(vm=0)
        X = 32
        for i in range(16):
            A(f"v_lshlrev_b32 {v(X+2*i)}, 16, {v(16+i)}")
            A(f"v_and_b32 {v(X+2*i+1)}, s6, {v(16+i)}")
        def rowsum(r):
            for sh in (8, 4, 2, 1):
                A(f"v_add_f32_dpp {v(r)}, {v(r)}, {v(r)} row_ror:{sh} row_mask:0xf bank_mask:0xf")
        for k in range(4):
            A(f"v_add_f32 {v(8+k)}, {v(X+k)}, {v(X+4+k)}")
        for i in range(2, 8):
            for k in range(4):
                A(f"v_add_f32 {v(8+k)}, {v(8+k)}, {v(X+4*i+k)}")
        A("v_add_f32 v8, v8, v9"); A("v_add_f32 v10, v10, v11"); A("v_add_f32 v8, v8, v10")
        rowsum(8)
        A(f"v_mul_f32 v8, {1/512}, v8")
        for i in range(32):
            A(f"v_sub_f32 {v(64+i)}, {v(X+i)}, v8")
        for k in range(4):
            A(f"v_mul_f32 {v(10+k)}, {v(64+k)}, {v(64+k)}")
        for i in range(1, 8):
            for k in range(4):
                A(f"v_fmac_f32 {v(10+k)}, {v(64+4*i+k)}, {v(64+4*i+k)}")
        A("v_add_f32 v10, v10, v11"); A("v_add_f32 v12, v12, v13"); A("v_add_f32 v10, v10, v12")
        rowsum(10)
        A(f"v_mul_f32 v10, {1/512}, v10")
        self.cvt(9, 8, 10)
        A("v_lshlrev_b32 v8, 16, v9")
        A("v_and_b32 v10, s6, v9")
        A(f"v_add_f32 v10, {hex(f2u(1e-5))}, v10")
        self.cvt(10, 10, 10)
        A("v_and_b32 v10, s6, v10")
        A("v_sqrt_f32 v10, v10")
        self.cvt(10, 10, 10)
        A("v_and_b32 v10, s6, v10")
        A("v_rcp_f32 v10, v10")
        for i in range(32):
            A(f"v_sub_f32 {v(64+i)}, {v(X+i)}, v8")
        for i in range(16):
            self.cvt(16+i, 64+2*i, 64+2*i+1)
        for i in range(16):
            A(f"v_lshlrev_b32 {v(X+2*i)}, 16, {v(16+i)}")
            A(f"v_and_b32 {v(X+2*i+1)}, s6, {v(16+i)}")
        for i in range(32):
            A(f"v_mul_f32 {v(X+i)}, {v(X+i)}, v10")
        for i in range(16):
            self.cvt(16+i, X+2*i, X+2*i+1)
        for u in range(4):
            A(f"buffer_store_dwordx4 {v(16+4*u,4)}, v6, {srd(SWS)}, s5 offen sc1")
            if u < 3: A("s_add_u32 s5, s5, 8192")
        A.label(sk)

    def xn_dma(self, sseg, sbuf):
        A = self.A
        A(f"s_lshl_b32 s3, {s(sseg)}, 15")
        A(f"s_lshl_b32 s4, {s(sW)}, 13")
        A("s_add_u32 s3, s3, s4")
        A(f"s_add_u32 m0, {s(sbuf)}, s4")
        if XN: A(f"s_add_u32 s3, s3, {XN}")
        for hlf in range(2):
            for q in range(4):
                A(f"buffer_load_dwordx4 v0, {srd(SWS)}, s3 offen offset:{q*1024} sc1 lds")
            if hlf == 0:
                A("s_add_u32 m0, m0, 4096")
                A("s_add_u32 s3, s3, 4096")

    def gemm1(self, mats, vXA, XB, mid=None):
        A = self.A
        def rd(ks):
            for tau in range(2):
                A(f"ds_read_b128 {v(XB+8*(ks%4)+4*tau,4)}, {v(vXA)} offset:{ks*2048+tau*1024}")
        rd(0); rd(1); rd(2)
        for ks in range(16):
            if ks + 3 < 16: rd(ks + 3)
            left = min(3, 15 - ks)
            self.wait(lgkm=2 * left)
            for (wb, ab, tr) in mats:
                for t in range(2):
                    for tau in range(2):
                        w_ = wb + (ks // 2) * 16 + 8 * t + 4 * (ks % 2)
                        x_ = XB + 8 * (ks % 4) + 4 * tau
                        d = ab + 8 * t + 4 * tau
                        c = None if ks == 0 else d
                        if tr: self.mfma(d, w_, x_, c)
                        else: self.mfma(d, x_, w_, c)
            if mid and ks == mid[0]: mid[1]()

    def proj(self, W2, vAct, AF, ACC, PK, sP):
        A = self.A
        for ks in range(4):
            for tau in range(2):
                A(f"ds_read_b128 {v(AF+16*tau+4*ks,4)}, {v(vAct)} offset:{tau*4096+ks*1024}")
        def epi(tp):
            ab = ACC + 16 * (tp % 2)
            for tau in range(2):
                pk = PK + 8 * (tp % 2) + 4 * tau
                for t in range(2):
                    d = ab + 8 * t + 4 * tau
                    self.cvt(pk + 2 * t, d, d + 1)
                    self.cvt(pk + 2 * t + 1, d + 2, d + 3)
                A(f"s_add_u32 s3, {s(sP)}, {(tp*2+tau)*NP*1024}")
                A(f"buffer_store_dwordx4 {v(pk,4)}, v0, {srd(SWS)}, s3 offen sc1")
        for tp in range(4):
            ab = ACC + 16 * (tp % 2)
            for ks in range(4):
                if tp == 0: self.wait(lgkm=6 - 2 * ks)
                for t in range(2):
                    for tau in range(2):
                        w_ = W2 + (tp * 2 + ks // 2) * 16 + 8 * t + 4 * (ks % 2)
                        d = ab + 8 * t + 4 * tau
                        self.mfma(d, w_, AF + 16 * tau + 4 * ks, None if ks == 0 else d)
                if ks == 1 and tp > 0: epi(tp - 1)
        epi(3)

    def bulk(self):
        A = self.A
        opt = self.opt
        sB, sH, sJ, sSeg, sBuf, sNx, sFl, sP, sFb, sT = 62, 63, 64, 65, 66, 67, 68, 69, 70, 71
        ACT = 65536
        A(f"s_sub_u32 {s(sB)}, {s(sSlot)}, 32")
        self.reset_flags(4, 6)
        self.ln()
        self.bar1_arrive(4)
        if opt.get('nobulk'):
            A("s_branch .Lend"); return
        A(f"s_mul_i32 {s(sH)}, {s(sB)}, 9363")
        A(f"s_lshr_b32 {s(sH)}, {s(sH)}, 16")
        A(f"s_mul_i32 s3, {s(sH)}, 7")
        A(f"s_sub_u32 {s(sJ)}, {s(sB)}, s3")
        vT, vq, vXA, vOne = 1, 4, 2, 3
        self.tr_addr(vT, 8)
        self.dma_voffs(vq, (0, 1, 2, 3), 8192, 16, 6, 8)
        A(f"s_lshl_b32 {s(sT)}, {s(sH)}, 8")
        units = []
        for m, sr in ((1, SWK), (2, SWV), (0, SWQ)):
            for u in range(8):
                units.append((sr, vq, (lambda u=u: A(f"s_add_u32 s3, {s(sT)}, {u*64*8192}")), 128 + (m * 8 + u) * 16))
        self.load_units(units, vT)
        self.bar1_wait(8, 9)
        A("s_barrier")
        A(f"s_mov_b32 {s(sSeg)}, {s(sJ)}")
        A(f"s_mov_b32 {s(sBuf)}, 0")
        self.xn_dma(sSeg, sBuf)
        A(f"v_mov_b32 {v(vXA)}, v0")
        A(f"v_mov_b32 {v(vOne)}, 1")
        A(f"s_mov_b32 {s(sFl)}, {HUGE}")
        self.wait(vm=0)
        XB, AQ, AK, AV, PK = 16, 48, 64, 80, 96
        top = A.newlabel('qkv')
        A.label(top)
        self.wait(vm=7)
        A("s_barrier")
        A(f"s_add_u32 {s(sNx)}, {s(sSeg)}, 7")
        A(f"s_xor_b32 {s(sBuf)}, {s(sBuf)}, 0x8000")
        self.xn_dma(sNx, sBuf)
        def flagA():
            self.wait(vm=8)
            A("s_mov_b64 exec, 1")
            A(f"buffer_store_byte {v(vOne)}, off, {srd(SWS)}, {s(sFl)} sc1")
            A("s_mov_b64 exec, -1")
        self.gemm1([(128 + 128, AK, True), (128 + 256, AV, False), (128, AQ, True)], vXA, XB, mid=(6, flagA))
        A(f"s_lshl_b32 s3, {s(sH)}, 6")
        A(f"s_add_u32 s3, s3, {s(sSeg)}")
        A(f"s_lshl_b32 {s(sFl)}, s3, 2")
        A(f"s_add_u32 {s(sFl)}, {s(sFl)}, {s(sW)}")
        A(f"s_add_u32 {s(sFl)}, {s(sFl)}, {FKV}")
        A("s_mul_i32 s3, s3, 24576")
        A(f"s_lshl_b32 s4, {s(sW)}, 10")
        A("s_add_u32 s3, s3, s4")
        A(f"s_add_u32 s3, s3, {QKV}")
        A("s_add_u32 s4, s3, s4")
        k = 0
        for (ab, boff, tr) in ((AK, 0, True), (AV, 8192, False), (AQ, 16384, True)):
            for o in range(2):
                pk = PK + 4 * k; k += 1
                for i in range(2):
                    d = ab + (8 * i + 4 * o if tr else 8 * o + 4 * i)
                    self.cvt(pk + 2 * i, d, d + 1)
                    self.cvt(pk + 2 * i + 1, d + 2, d + 3)
                if tr:
                    A(f"s_add_u32 s5, s3, {boff + o*4096}")
                else:
                    A(f"s_add_u32 s5, s4, {boff + o*1024}")
                A(f"buffer_store_dwordx4 {v(pk,4)}, v0, {srd(SWS)}, s5 offen sc1")
        A(f"v_xor_b32 {v(vXA)}, 0x8000, {v(vXA)}")
        A(f"s_mov_b32 {s(sSeg)}, {s(sNx)}")
        A(f"s_cmp_lt_u32 {s(sSeg)}, 64")
        A(f"s_cbranch_scc1 {top}")
        self.wait(vm=0)
        A("s_mov_b64 exec, 1")
        A(f"buffer_store_byte {v(vOne)}, off, {srd(SWS)}, {s(sFl)} sc1")
        A("s_mov_b64 exec, -1")
        A("s_barrier")
        if opt.get('stopA'):
            A("s_branch .Lend"); return
        A(f"s_lshr_b32 {s(sFb)}, {s(sB)}, 4")
        self.dma_voffs(vq, (0, 1, 2, 3), 3584, 16, 6, 8)
        self.dma_voffs(vq + 8, (0, 1, 2, 3), 1024, 16, 8, 8)
        A(f"s_lshl_b32 {s(sT)}, {s(sFb)}, 8")
        A(f"s_lshl_b32 {s(sNx)}, {s(sFb)}, 17")
        units = []
        for m, sr in ((0, SWG), (1, SWU)):
            for u in range(8):
                units.append((sr, vq, (lambda u=u: A(f"s_add_u32 s3, {s(sT)}, {u*64*3584}")), 128 + (m * 8 + u) * 16))
        for tp in range(4):
            for u in range(2):
                units.append((SWD, vq + 8, (lambda u=u, tp=tp: A(f"s_add_u32 s3, {s(sNx)}, {u*65536+tp*64}")), 384 + (tp * 2 + u) * 16))
        self.load_units(units, vT)
        A("s_barrier")
        A(f"s_and_b32 {s(sSeg)}, {s(sB)}, 15")
        A(f"s_lshl_b32 {s(sSeg)}, {s(sSeg)}, 2")
        A(f"s_mov_b32 {s(sBuf)}, 0")
        self.xn_dma(sSeg, sBuf)
        vAct, vActW = 4, 5
        A(f"v_mov_b32 {v(vXA)}, v0")
        A(f"v_add_u32 {v(vAct)}, {ACT}, v0")
        A(f"s_lshl_b32 s3, {s(sW)}, 10")
        A(f"v_add_u32 {v(vActW)}, s3, {v(vAct)}")
        A(f"s_mov_b32 {s(sFl)}, {HUGE}")
        self.wait(vm=0)
        AG, AU = 48, 64
        top = A.newlabel('ffn')
        A.label(top)
        self.wait(vm=9)
        A("s_barrier")
        A(f"s_add_u32 {s(sNx)}, {s(sSeg)}, 1")
        A(f"s_xor_b32 {s(sBuf)}, {s(sBuf)}, 0x8000")
        self.xn_dma(sNx, sBuf)
        def flagF():
            self.wait(vm=8)
            A("s_mov_b64 exec, 1")
            A(f"buffer_store_dword {v(vOne)}, off, {srd(SWS)}, {s(sFl)} sc1")
            A("s_mov_b64 exec, -1")
        self.gemm1([(128, AG, True), (256, AU, True)], vXA, XB, mid=(8, flagF))
        T = 80
        for i in range(16):
            A(f"v_mul_f32 {v(T+i)}, {hex(f2u(-LOG2E))}, {v(AG+i)}")
        for i in range(16):
            A(f"v_exp_f32 {v(T+i)}, {v(T+i)}")
        for i in range(16):
            A(f"v_add_f32 {v(T+i)}, 1.0, {v(T+i)}")
        for i in range(16):
            A(f"v_rcp_f32 {v(T+i)}, {v(T+i)}")
        for i in range(16):
            A(f"v_mul_f32 {v(AG+i)}, {v(AG+i)}, {v(AU+i)}")
        for i in range(16):
            A(f"v_mul_f32 {v(AG+i)}, {v(AG+i)}, {v(T+i)}")
        for tau in range(2):
            for t in range(2):
                d = AG + 8 * t + 4 * tau
                self.cvt(PK + 4 * tau + 2 * t, d, d + 1)
                self.cvt(PK + 4 * tau + 2 * t + 1, d + 2, d + 3)
            A(f"ds_write_b128 {v(vActW)}, {v(PK+4*tau,4)} offset:{tau*4096}")
        A(f"s_lshl_b32 s3, {s(sSeg)}, 2")
        A(f"s_add_u32 s3, s3, {s(sW)}")
        A(f"s_lshl_b32 {s(sFl)}, s3, 6")
        A(f"s_add_u32 {s(sFl)}, {s(sFl)}, {s(sFb)}")
        A(f"s_lshl_b32 {s(sFl)}, {s(sFl)}, 2")
        A(f"s_add_u32 {s(sFl)}, {s(sFl)}, {FP + 32*4}")
        A(f"s_mul_i32 s3, s3, {8*NP}")
        A(f"s_add_u32 s3, s3, {s(sFb)}")
        A("s_lshl_b32 s3, s3, 10")
        A(f"s_add_u32 {s(sP)}, s3, {PB + 32*1024}")
        self.wait(lgkm=0)
        A("s_barrier")
        self.proj(384, vAct, 16, 48, 96, sP)
        A(f"v_xor_b32 {v(vXA)}, 0x8000, {v(vXA)}")
        A(f"s_mov_b32 {s(sSeg)}, {s(sNx)}")
        A(f"s_and_b32 s3, {s(sSeg)}, 3")
        A("s_cmp_lg_u32 s3, 0")
        A(f"s_cbranch_scc1 {top}")
        self.wait(vm=0)
        A("s_mov_b64 exec, 1")
        A(f"buffer_store_dword {v(vOne)}, off, {srd(SWS)}, {s(sFl)} sc1")
        A("s_mov_b64 exec, -1")
        A("s_barrier")
        if opt.get('stopF'):
            A("s_branch .Lend"); return
        A(f"s_lshl_b32 {s(sNx)}, {s(sH)}, 17")
        units = []
        for tp in range(4):
            for u in range(2):
                units.append((SWO, vq + 8, (lambda u=u, tp=tp: A(f"s_add_u32 s3, {s(sNx)}, {u*65536+tp*64}")), 384 + (tp * 2 + u) * 16))
        self.load_units(units, vT)
        A("s_barrier")
        BIAS, SEL, vRL, vRL2, vOut, vFP = 128, 136, 6, 7, 8, 9
        QFr, KFr, VFr, KM, VM = 140, 156, 188, 204, 220
        SX_, SM_, PX, PM, OA = 228, 236, 240, 244, 112
        sTq, sEh, sBlk, sRed = 72, 73, 74, 75
        A(f"s_and_b32 {s(sTq)}, {s(sW)}, 1")
        A(f"s_lshr_b32 {s(sEh)}, {s(sW)}, 1")
        A("v_bfe_u32 v10, v0, 6, 2")
        A("v_lshlrev_b32 v10, 3, v10")
        A("v_bfe_u32 v11, v0, 4, 2")
        A("v_add_u32 v10, v10, v11")
        A(f"s_lshl_b32 s3, {s(sTq)}, 2")
        A("v_add_u32 v12, s3, v10")
        A("v_lshrrev_b32 v11, 5, v0")
        A("v_and_b32 v11, 0x18, v11")
        A("v_sub_u32 v12, v12, v11")
        A(f"v_mov_b32 v13, {hex(f2u(-1e30))}")
        for jj in range(8):
            A(f"v_cmp_le_i32 vcc, {jj}, v12")
            A(f"v_cndmask_b32 {v(BIAS+jj)}, v13, 0, vcc")
        self.selector(SEL, 12)
        A("v_and_b32 v12, 0x300, v0")
        A("v_and_b32 v13, 0xf0, v0")
        A(f"v_lshl_or_b32 {v(vRL)}, v12, 2, v13")
        A(f"s_lshl_b32 s3, {s(sW)}, 8")
        A(f"v_add_u32 {v(vRL)}, s3, {v(vRL)}")
        A("v_mov_b32 v13, 0x200")
        A("v_cmp_gt_u32 vcc, v13, v0")
        A(f"v_mov_b32 v14, {HUGE}")
        A(f"v_cndmask_b32 {v(vRL2)}, v14, {v(vRL)}, vcc")
        A(f"s_and_b32 s3, {s(sH)}, 1")
        A("s_lshl_b32 s3, s3, 2")
        A("v_add_u32 v10, s3, v10")
        A("v_lshlrev_b32 v10, 10, v10")
        A("v_lshrrev_b32 v12, 5, v12")
        A(f"s_lshr_b32 s3, {s(sH)}, 1")
        A("s_lshl_b32 s3, s3, 6")
        A(f"s_lshl_b32 s4, {s(sW)}, 4")
        A("s_add_u32 s3, s3, s4")
        A("v_add3_u32 v10, v10, v12, s3")
        A(f"v_cndmask_b32 {v(vOut)}, v14, v10, vcc")
        A(f"v_lshrrev_b32 {v(vFP)}, 2, v0")
        for i in (0, 1, 4, 5):
            A(f"v_mov_b32 {v(PM+i)}, 0")
        A(f"s_lshl_b32 s3, {s(sTq)}, 12")
        A(f"s_lshl_b32 s4, {s(sEh)}, 11")
        A("s_add_u32 s3, s3, s4")
        A(f"v_add_u32 {v(vActW)}, s3, {v(vAct)}")
        A(f"s_mov_b32 {s(sSeg)}, {s(sJ)}")
        top = A.newlabel('att')
        A.label(top)
        A(f"s_lshl_b32 {s(sBlk)}, {s(sH)}, 6")
        A(f"s_add_u32 {s(sBlk)}, {s(sBlk)}, {s(sSeg)}")
        A(f"s_mul_i32 s3, {s(sBlk)}, 24576")
        A(f"s_add_u32 s3, s3, {QKV}")
        A(f"s_lshl_b32 s4, {s(sTq)}, 12")
        A("s_add_u32 s4, s4, s3")
        A("s_add_u32 s4, s4, 16384")
        for ks in range(4):
            A(f"buffer_load_dwordx4 {v(QFr+4*ks,4)}, v0, {srd(SWS)}, s4 offen offset:{ks*1024} sc1")
        A("s_add_u32 s4, s3, 4096")
        for tau in range(2):
            for ks in range(4):
                A(f"buffer_load_dwordx4 {v(KFr+16*tau+4*ks,4)}, v0, {srd(SWS)}, {'s3' if tau == 0 else 's4'} offen offset:{ks*1024} sc1")
        A(f"s_lshl_b32 s4, {s(sEh)}, 12")
        A("s_add_u32 s4, s4, s3")
        A("s_add_u32 s4, s4, 8192")
        for i in range(4):
            A(f"buffer_load_dwordx4 {v(VFr+4*i,4)}, v0, {srd(SWS)}, s4 offen offset:{i*1024} sc1")
        self.wait(vm=4)
        for ks in range(4):
            for tau in range(2):
                d = SX_ + 4 * tau
                self.mfma(d, KFr + 16 * tau + 4 * ks, QFr + 4 * ks, BIAS + 4 * tau if ks == 0 else d)
        if not opt.get('noFM'):
            A(f"s_lshl_b32 s6, {s(sBlk)}, 2")
            A(f"s_add_u32 s6, s6, {FM}")
            lp, ex = self.spin_begin()
            A(f"buffer_load_dword v10, off, {srd(SWS)}, s6 sc1")
            self.wait(vm=0)
            A("v_readfirstlane_b32 s4, v10")
            A("s_cmp_eq_u32 s4, 0x01010101")
            A(f"s_cbranch_scc1 {ex}")
            self.spin_end(lp, ex)
        A(f"s_lshl_b32 s3, {s(sBlk)}, 13")
        A(f"s_add_u32 s3, s3, {KVM}")
        for ks in range(4):
            A(f"buffer_load_dwordx4 {v(KM+4*ks,4)}, v0, {srd(SWS)}, s3 offen offset:{ks*1024} sc1")
        A(f"s_lshl_b32 s4, {s(sEh)}, 11")
        A("s_add_u32 s4, s4, s3")
        A("s_add_u32 s4, s4, 4096")
        for i in range(2):
            A(f"buffer_load_dwordx4 {v(VM+4*i,4)}, v0, {srd(SWS)}, s4 offen offset:{i*1024} sc1")
        A(f"v_max3_f32 v10, {v(SX_)}, {v(SX_+1)}, {v(SX_+2)}")
        A(f"v_max3_f32 v11, {v(SX_+3)}, {v(SX_+4)}, {v(SX_+5)}")
        A(f"v_max3_f32 v10, v10, {v(SX_+6)}, {v(SX_+7)}")
        A("v_max_f32 v10, v10, v11")
        self.wait(vm=2)
        for ks in range(4):
            self.mfma(SM_, KM + 4 * ks, QFr + 4 * ks, None if ks == 0 else SM_)
        A(f"v_max3_f32 v10, v10, {v(SM_)}, {v(SM_+1)}")
        A(f"v_max3_f32 v10, v10, {v(SM_+2)}, {v(SM_+3)}")
        def xred(r, t, op):
            for sw in ('16', '32'):
                A(f"v_mov_b32 {v(t)}, {v(r)}")
                A(f"v_permlane{sw}_swap_b32 {v(t)}, {v(r)}")
                A(f"{op} {v(r)}, {v(r)}, {v(t)}")
        xred(10, 11, 'v_max_f32')
        A(f"s_mov_b32 s3, {hex(CSC)}")
        A("v_mul_f32 v10, s3, v10")
        for i in range(12):
            A(f"v_fma_f32 {v(SX_+i)}, {v(SX_+i)}, s3, -v10")
        for i in range(12):
            A(f"v_exp_f32 {v(SX_+i)}, {v(SX_+i)}")
        for i in range(4):
            self.cvt(PX + i, SX_ + 2 * i, SX_ + 2 * i + 1)
        self.cvt(PM + 2, SM_, SM_ + 1)
        self.cvt(PM + 3, SM_ + 2, SM_ + 3)
        self.wait(vm=0)
        for i in range(4):
            self.mfma(OA + 4 * i, VFr + 4 * i, PX, None)
        for i in range(4):
            self.mfma(OA + 4 * i, VM + 4 * (i // 2), PM + 2 if i % 2 == 0 else PM, OA + 4 * i)
        A(f"v_add_f32 v11, {v(SM_)}, {v(SM_+1)}")
        A(f"v_add_f32 v12, {v(SM_+2)}, {v(SM_+3)}")
        A("v_add_f32 v11, v11, v12")
        A(f"v_fma_f32 v11, v11, 0.5, {v(SX_)}")
        for i in range(1, 8):
            A(f"v_add_f32 v11, v11, {v(SX_+i)}")
        xred(11, 12, 'v_add_f32')
        A("v_rcp_f32 v11, v11")
        for i in range(16):
            A(f"v_mul_f32 {v(OA+i)}, {v(OA+i)}, v11")
        for k2 in range(2):
            for i in range(4):
                self.cvt(PK + 4 * k2 + i, OA + 8 * k2 + 2 * i, OA + 8 * k2 + 2 * i + 1)
            A(f"ds_write_b128 {v(vActW)}, {v(PK+4*k2,4)} offset:{k2*1024}")
        A(f"s_lshl_b32 s3, {s(sSeg)}, 2")
        A(f"s_add_u32 s3, s3, {s(sW)}")
        A(f"s_lshl_b32 {s(sFl)}, s3, 6")
        A(f"s_add_u32 {s(sFl)}, {s(sFl)}, {s(sH)}")
        A(f"s_lshl_b32 {s(sFl)}, {s(sFl)}, 2")
        A(f"s_add_u32 {s(sFl)}, {s(sFl)}, {FP}")
        A(f"s_mul_i32 s3, s3, {8*NP}")
        A(f"s_add_u32 s3, s3, {s(sH)}")
        A("s_lshl_b32 s3, s3, 10")
        A(f"s_add_u32 {s(sP)}, s3, {PB}")
        self.wait(lgkm=0)
        A("s_barrier")
        self.proj(384, vAct, 16, 48, 96, sP)
        A(f"s_lshl_b32 {s(sRed)}, {s(sSeg)}, 15")
        A(f"buffer_load_dwordx2 {v(14,2)}, {v(vOut)}, {srd(SX)}, {s(sRed)} offen")
        self.wait(vm=1)
        A("s_mov_b64 exec, 1")
        A(f"buffer_store_dword {v(vOne)}, off, {srd(SWS)}, {s(sFl)} sc1")
        A("s_mov_b64 exec, -1")
        A("s_barrier")
        A(f"s_lshl_b32 s6, {s(sSeg)}, 2")
        A(f"s_lshr_b32 s3, {s(sH)}, 3")
        A("s_add_u32 s6, s6, s3")
        A("s_lshl_b32 s6, s6, 8")
        A(f"s_add_u32 s6, s6, {FP}")
        lp, ex = self.spin_begin()
        A(f"buffer_load_dword v10, {v(vFP)}, {srd(SWS)}, s6 offen sc1")
        self.wait(vm=0)
        A("v_cmp_eq_u32 vcc, 1, v10")
        A(f"s_and_b32 s5, vcc_hi, {(1 << (NP-32)) - 1}")
        A(f"s_xor_b32 s5, s5, {(1 << (NP-32)) - 1}")
        A("s_not_b32 s4, vcc_lo")
        A("s_or_b32 s4, s4, s5")
        A(f"s_cbranch_scc0 {ex}")
        self.spin_end(lp, ex)
        A(f"s_lshl_b32 s3, {s(sSeg)}, 5")
        A(f"s_add_u32 s3, s3, {s(sH)}")
        A(f"s_mul_i32 s3, s3, {NP*1024}")
        A(f"s_add_u32 s3, s3, {PB}")
        RD = 16
        for u in range(12):
            A(f"buffer_load_dwordx4 {v(RD+4*u,4)}, {v(vRL if u < 11 else vRL2)}, {srd(SWS)}, s3 offen sc1")
            if u < 11: A("s_add_u32 s3, s3, 4096")
        RA, RB = 64, 68
        for u in range(12):
            self.wait(vm=11 - u)
            d = RA if u < 8 else RB
            self.mfma(d, SEL, RD + 4 * u, None if u in (0, 8) else d)
        A("s_mov_b32 s6, 0xffff0000")
        A("v_lshlrev_b32 v72, 16, v14"); A("v_and_b32 v73, s6, v14")
        A("v_lshlrev_b32 v74, 16, v15"); A("v_and_b32 v75, s6, v15")
        def rnd4(b, t):
            self.cvt(t, b, b + 1); self.cvt(t + 1, b + 2, b + 3)
            A(f"v_lshlrev_b32 {v(b)}, 16, {v(t)}"); A(f"v_and_b32 {v(b+1)}, s6, {v(t)}")
            A(f"v_lshlrev_b32 {v(b+2)}, 16, {v(t+1)}"); A(f"v_and_b32 {v(b+3)}, s6, {v(t+1)}")
        rnd4(RA, 10)
        for i in range(4): A(f"v_add_f32 {v(72+i)}, {v(72+i)}, {v(RA+i)}")
        rnd4(72, 10)
        rnd4(RB, 12)
        for i in range(4): A(f"v_add_f32 {v(72+i)}, {v(72+i)}, {v(RB+i)}")
        self.cvt(10, 72, 73); self.cvt(11, 74, 75)
        A(f"buffer_store_dwordx2 {v(10,2)}, {v(vOut)}, {srd(SOUT)}, {s(sRed)} offen")
        A(f"s_add_u32 {s(sSeg)}, {s(sSeg)}, 7")
        A(f"s_cmp_lt_u32 {s(sSeg)}, 64")
        A(f"s_cbranch_scc1 {top}")
        A("s_branch .Lend")

    def rec(self):
        A = self.A
        A.label('.Lrec')
        self.reset_flags(4, 6)
        if self.opt.get('norec'):
            self.bar1_arrive(4)
            A("s_branch .Lend"); return
        from rec import emit_rec
        emit_rec(self)

    def build(self):
        A = self.A
        self.prologue()
        self.bulk()
        self.rec()
        A.label('.Lend')
        A("s_endpgm")
        body = A.finalize()
        ref = open(os.path.join(os.path.dirname(os.path.abspath(__file__)), '..', 'cdna_kernels', NAME + '.s.ref')).read()
        head = []
        for l in ref.split('\n'):
            if l.startswith('; @launch'):
                head.append(f'; @launch grid=(256,1,1) block=(256,1,1) lds={LDS_BYTES}')
            elif l.startswith(';') or l.startswith('.'):
                head.append(l)
            else:
                break
        tail = f"""
.section .rodata,"a"
.p2align 6
.amdhsa_kernel {NAME}_kernel
  .amdhsa_next_free_vgpr 512
  .amdhsa_next_free_sgpr 102
  .amdhsa_accum_offset 256
  .amdhsa_group_segment_fixed_size 0
  .amdhsa_kernarg_size 112
  .amdhsa_user_sgpr_count 2
  .amdhsa_user_sgpr_kernarg_segment_ptr 1
  .amdhsa_system_sgpr_workgroup_id_x 1
.end_amdhsa_kernel
"""
        return '\n'.join(head) + f'\n{NAME}_kernel:\n' + body + tail

if __name__ == '__main__':
    opt = {}
    out = None
    for a_ in sys.argv[1:]:
        if a_.startswith('-o'): out = a_[2:]
        elif '=' in a_:
            k, x = a_.split('='); opt[k] = int(x, 0)
        else: opt[a_] = 1
    sys.modules['gen'] = sys.modules['__main__']
    txt = Gen(opt).build()
    if out is None:
        out = os.path.join(os.path.dirname(os.path.abspath(__file__)), '..', 'cdna_kernels', NAME + '.s')
    open(out, 'w').write(txt)
    print('wrote', out, len(txt), 'bytes')
```

```python
import re

def v(a, n=1): return f"v{a}" if n == 1 else f"v[{a}:{a+n-1}]"
def a(x, n=1): return f"a{x}" if n == 1 else f"a[{x}:{x+n-1}]"
def s(x, n=1): return f"s{x}" if n == 1 else f"s[{x}:{x+n-1}]"
def R(x, n=1):
    if x >= 256:
        return a(x-256, n)
    assert x+n <= 256
    return v(x, n)

_REG = re.compile(r'^(-|\|)?(?:abs\()?([vas])(?:(\d+)|\[(\d+):(\d+)\])\)?\|?$')
def parse_reg(tok):
    tok = tok.strip()
    if tok in ('vcc',): return [('s', 106), ('s', 107)]
    if tok == 'vcc_lo': return [('s', 106)]
    if tok == 'vcc_hi': return [('s', 107)]
    if tok == 'exec': return [('s', 126), ('s', 127)]
    if tok == 'exec_lo': return [('s', 126)]
    if tok == 'exec_hi': return [('s', 127)]
    if tok == 'm0': return [('s', 124)]
    m = _REG.match(tok)
    if not m: return []
    f = m.group(2)
    if m.group(3) is not None: lo = hi = int(m.group(3))
    else: lo, hi = int(m.group(4)), int(m.group(5))
    if f == 'a': return [('v', 256+i) for i in range(lo, hi+1)]
    return [(f, i) for i in range(lo, hi+1)]

def split_ops(sx):
    out, cur, d = [], '', 0
    for ch in sx:
        if ch in '[(': d += 1
        if ch in '])': d -= 1
        if ch == ',' and d == 0:
            out.append(cur.strip()); cur = ''
        else: cur += ch
    if cur.strip(): out.append(cur.strip())
    return out

TRANS = ('v_exp_f32', 'v_log_f32', 'v_rcp_f32', 'v_rsq_f32', 'v_sqrt_f32', 'v_sin_f32', 'v_cos_f32', 'v_rcp_iflag_f32')

class Ins:
    def __init__(self, text):
        self.text = text
        t = text.split(';')[0].strip()
        self.label = None
        self.mn = None
        if t.endswith(':'):
            self.label = t[:-1]; return
        if not t or t.startswith('.'): return
        sp = t.split(None, 1)
        self.mn = mn = sp[0]
        rest = sp[1] if len(sp) > 1 else ''
        ops = split_ops(rest)
        mods = ''
        if ops:
            parts = ops[-1].split(None, 1)
            ops[-1] = parts[0]
            mods = parts[1] if len(parts) > 1 else ''
        self.ops, self.mods = ops, mods
        regs = [parse_reg(o) for o in ops]
        self.rd, self.wr = set(), set()
        self.cls = None
        self.srcC = set(); self.srcAB = set(); self.D = ()
        self.passes = 0
        self.widestore = set()
        def allr(xs):
            r = set()
            for x in xs: r.update(x)
            return r
        if mn.startswith('v_mfma') or mn.startswith('v_smfmac'):
            self.cls = 'mfma'
            self.passes = 8 if '32x32' in mn else 4
            self.wr = set(regs[0]); self.D = tuple(regs[0])
            if mn.startswith('v_smfmac'):
                self.srcC = set(regs[0]); self.srcAB = allr(regs[1:4])
                self.Ctuple = tuple(regs[0])
            else:
                self.srcC = set(regs[3]); self.srcAB = allr(regs[1:3])
                self.Ctuple = tuple(regs[3])
            self.rd = self.srcC | self.srcAB
        elif mn.startswith('v_'):
            self.cls = 'valu'
            base = re.sub(r'_(e32|e64|dpp|sdwa)$', '', mn)
            self.base = base
            self.trans = base in TRANS
            self.dpp = mn.endswith('_dpp') or 'row_' in mods or 'quad_perm' in mods
            self.perml = base.startswith('v_permlane')
            self.rdlane = base in ('v_readlane_b32', 'v_readfirstlane_b32')
            if base == 'v_nop':
                pass
            elif self.perml:
                self.rd = allr(regs); self.wr = allr(regs)
            elif base in ('v_add_co_u32', 'v_sub_co_u32', 'v_subrev_co_u32', 'v_addc_co_u32', 'v_subb_co_u32', 'v_div_scale_f32', 'v_mad_u64_u32'):
                self.wr = allr(regs[:2]); self.rd = allr(regs[2:])
            else:
                self.wr = set(regs[0]); self.rd = allr(regs[1:])
                if base in ('v_fmac_f32', 'v_pk_fmac_f16', 'v_dot2c_f32_bf16', 'v_writelane_b32') or self.dpp:
                    self.rd |= set(regs[0])
                if base.startswith('v_cmpx'): raise Exception('avoid v_cmpx')
                if base == 'v_cndmask_b32' and len(ops) == 3: self.rd |= {('s', 106), ('s', 107)}
        elif mn.startswith('buffer_') or mn.startswith('global_'):
            self.cls = 'vmem'
            lds = (' lds' in ' ' + mods) or ('_lds_' in mn)
            self.ldsdma = lds
            if 'load' in mn and not lds:
                self.wr = set(regs[0]); self.rd = allr(regs[1:])
            elif 'atomic' in mn:
                self.rd = allr(regs)
                if 'sc0' in mods: self.wr = set(regs[0])
            else:
                self.rd = allr(regs)
                if 'store' in mn and ('x4' in mn or 'x3' in mn):
                    self.widestore = set(regs[0] if mn.startswith('buffer_') else regs[1])
            if lds: self.rd.add(('s', 124))
        elif mn.startswith('ds_'):
            self.cls = 'ds'
            if 'read' in mn or 'permute' in mn or 'swizzle' in mn:
                self.wr = set(regs[0]); self.rd = allr(regs[1:])
            else:
                self.rd = allr(regs)
        elif mn.startswith('s_'):
            self.cls = 'salu'
            if mn.startswith('s_cmp') or mn.startswith('s_cbranch') or mn in ('s_branch', 's_waitcnt', 's_barrier', 's_nop', 's_endpgm', 's_sleep', 's_setprio', 's_bitcmp1_b64', 's_bitcmp0_b64', 's_bitcmp1_b32', 's_bitcmp0_b32'):
                self.rd = allr(regs)
            else:
                if regs: self.wr = set(regs[0]); self.rd = allr(regs[1:])
                if 'saveexec' in mn: self.wr |= {('s', 126), ('s', 127)}
        else:
            raise Exception('unknown instr ' + text)
    def states(self):
        if self.mn == 's_nop': return int(self.ops[0], 0) + 1
        return 1

def need(p, c):
    n = 0
    if p.cls == 'valu':
        vw = {r for r in p.wr if r[0] == 'v'}
        sw = {r for r in p.wr if r[0] == 's'}
        if c.cls == 'mfma' and vw & c.rd: n = max(n, 2)
        if c.cls == 'valu':
            if vw & c.rd:
                if c.dpp or c.perml: n = max(n, 2)
                if c.rdlane: n = max(n, 1)
                if p.trans and not c.trans: n = max(n, 1)
                if p.trans and c.trans: n = max(n, 1)
            if sw & c.rd:
                n = max(n, 4 if c.base in ('v_readlane_b32', 'v_writelane_b32', 'v_div_fmas_f32') else 2)
        if c.cls in ('vmem', 'ds') :
            if sw & c.rd: n = max(n, 5)
            if p.trans and vw & c.rd: n = max(n, 1)
        if c.cls == 'salu' and sw & c.rd and p.rdlane: n = max(n, 1)
    if p.cls == 'mfma':
        D = p.wr
        big = {4: 8, 8: 12}[p.passes]
        if c.cls == 'mfma':
            if D & c.srcAB: n = max(n, big)
            if D & c.srcC:
                if c.Ctuple == p.D and c.passes == p.passes: pass
                else: n = max(n, {4: 6, 8: 10}[p.passes])
            elif D & c.wr: n = max(n, big)
        elif c.cls in ('valu', 'vmem', 'ds'):
            if D & (c.rd | c.wr): n = max(n, big)
        if c.cls == 'valu' and p.srcC & c.wr: n = max(n, {4: 3, 8: 7}[p.passes])
    if p.cls == 'salu' and ('s', 124) in p.wr:
        if c.cls == 'vmem' and c.ldsdma: n = max(n, 1)
    if p.cls == 'vmem' and p.widestore and c.cls in ('valu', 'mfma') and p.widestore & c.wr: n = max(n, 2)
    return n

WIN = 14
class Asm:
    def __init__(self):
        self.lines = []
        self.uid = 0
    def __call__(self, text):
        for l in text.split('\n'):
            l = l.strip()
            if l: self.lines.append(l)
    def label(self, name): self.lines.append(name + ':')
    def newlabel(self, p='L'):
        self.uid += 1
        return f".{p}{self.uid}"
    def finalize(self, timed=True):
        ins = [Ins(l) for l in self.lines]
        entry = {}
        pads = {}
        for it in range(6):
            changed = False
            win = []
            pads = {}
            busy = 0
            for idx, i in enumerate(ins):
                if i.label:
                    for (p, d) in entry.get(i.label, []):
                        win.append((p, d))
                    busy = 0
                    continue
                if i.mn is None: continue
                stall = busy if (timed and i.cls == 'mfma') else 0
                n = 0
                for (p, d) in win:
                    q = need(p, i)
                    if q > d: n = max(n, q - d)
                if n: pads[idx] = n
                st = max(n, stall) + i.states()
                busy = max(0, busy - st)
                if i.cls == 'mfma': busy = i.passes - 1
                win = [(p, d + st) for (p, d) in win if d + st < WIN]
                win.append((i, 0))
                if i.mn.startswith('s_cbranch') or i.mn == 's_branch':
                    tgt = i.ops[0]
                    cur = entry.setdefault(tgt, [])
                    for (p, d) in win:
                        if not any(p is p2 and d2 <= d for (p2, d2) in cur):
                            cur.append((p, d)); changed = True
                if i.mn in ('s_branch', 's_endpgm'): win = []
            if not changed: break
        out = []
        for idx, i in enumerate(ins):
            if idx in pads:
                n = pads[idx]
                while n > 0:
                    k = min(n, 16); out.append(f"    s_nop {k-1}"); n -= k
            out.append(i.text if i.label or i.mn is None else '    ' + i.text)
        return '\n'.join(out) + '\n'
```

```python
from asmlib import *
import gen as G
from gen import *

MX, QT, KT, OX, SELL, KVB = 0, 8192, 10496, 12800, 14848, 16384
RS = 1056

def emit_rec(g):
    A = g.A
    opt = g.opt
    sH, sS, sMemRd, sMemWr, sMemRst, sPartWr, sPartRd, sKV, sKVM, sFM = range(62, 72)
    sRdy, sLo, sHi, sC, sT, sT2, sDb, sFKV, sMW0, sPf, sPartW2 = 72, 74, 76, 78, 79, 80, 81, 82, 83, 84, 85
    sKVM2, sKVL = 4, 5
    vIdx, vQKw, vTR, vPS, vPL, vMS, vWL, vMX, vOw, vFl = range(1, 11)
    vA, KX, aQ, aK, aV = 16, 80, 112, 116, 120
    def lc(i): return vA + 4 * i
    wait, mfma, smf, cvt = g.wait, g.mfma, g.smf, g.cvt

    A(f"s_mov_b32 {s(sH)}, {s(sSlot)}")
    A(f"s_add_u32 {s(sLB)}, {s(sLB)}, 32768")
    def bf(d, off, w): A(f"v_bfe_u32 {v(d)}, v0, {off}, {w}")
    bf(11, 4, 2); bf(12, 6, 2)
    A(f"v_and_b32 {v(vPL)}, 0x300, v0")
    A(f"v_lshl_or_b32 {v(vPL)}, v11, 6, {v(vPL)}")
    A(f"v_lshl_or_b32 {v(vPL)}, v12, 4, {v(vPL)}")
    bf(13, 8, 2)
    A("v_lshlrev_b32 v14, 4, v11")
    A("v_lshl_or_b32 v14, v13, 2, v14")
    A(f"v_mov_b32 v15, {HUGE}")
    A("v_cmp_eq_u32 vcc, 0, v12")
    A(f"v_cndmask_b32 {v(vMS)}, v15, v14, vcc")
    for i in range(4): A(f"v_mov_b32 {v(vA+i)}, -1")
    A(f"s_and_b32 s3, {s(sH)}, 7")
    A("s_lshl_b32 s3, s3, 10")
    A(f"s_lshr_b32 s4, {s(sH)}, 3")
    A("s_lshl_b32 s4, s4, 8")
    A("s_add_u32 s3, s3, s4")
    A(f"s_lshl_b32 s4, {s(sW)}, 6")
    A("s_add_u32 s3, s3, s4")
    A(f"s_add_u32 {s(sMW0)}, s3, {MEMR}")
    for i in range(4):
        A(f"s_add_u32 s3, {s(sMW0)}, {i*8192}")
        A(f"buffer_store_dword {v(vA)}, {v(vMS)}, {srd(SWS)}, s3 offen sc1")
    A(f"s_lshl_b32 s3, {s(sH)}, 13")
    A(f"s_lshl_b32 s4, {s(sW)}, 11")
    A("s_add_u32 s3, s3, s4")
    A(f"s_add_u32 {s(sPartRd)}, s3, {PART}")
    A(f"s_add_u32 s3, {s(sPartRd)}, 0x40000")
    for sl in (s(sPartRd), 's3'):
        for u in range(2):
            A(f"buffer_store_dwordx4 {v(vA,4)}, {v(vPL)}, {srd(SWS)}, {sl} offen offset:{u*1024} sc1")
    sk = A.newlabel('xm')
    A(f"s_cmp_lg_u32 {s(sW)}, 0")
    A(f"s_cbranch_scc1 {sk}")
    A("s_mov_b64 exec, 1")
    A(f"s_lshl_b32 s3, 1, {s(sXcc)}")
    A("v_mov_b32 v15, s3")
    A(f"buffer_atomic_or v15, off, {srd(SDBG)}, 0 offset:8 sc1")
    A("s_mov_b64 exec, -1")
    A.label(sk)
    vT, vT2, vq, vq2 = 20, 22, 24, 28
    g.tr_addr(vT, 21)
    A(f"v_and_b32 {v(vT2)}, 0xffffff7f, {v(vT)}")
    bf(21, 7, 1)
    A(f"v_lshl_or_b32 {v(vT2)}, v21, 3, {v(vT2)}")
    g.dma_voffs(vq, (2, 3, 0, 1), 8192, 128, 6, 21)
    g.dma_voffs(vq2, (0, ('c', 6), 1, 2), 1024, 16, 8, 21)
    A(f"v_add_u32 {v(vWL)}, {s(sLB)}, v0")
    A(f"s_lshl_b32 {s(sT)}, {s(sH)}, 8")
    A(f"s_lshl_b32 s3, {s(sW)}, 18")
    A(f"s_add_u32 {s(sT)}, {s(sT)}, s3")
    A(f"s_lshl_b32 {s(sT2)}, {s(sH)}, 17")
    def qkv_so(ls): return lambda: A(f"s_xor_b32 s3, {s(sT)}, {ls << 17}")
    def wo_so(u, ch): return lambda: A(f"s_add_u32 s3, {s(sT2)}, {(ch//2)*65536 + (ch%2)*8192 + u*128}")
    units = []
    W = {}
    nxt = [128]
    alt = (vT2, 128)
    def reg_unit(key, sr, vqq, so, *x):
        W[key] = nxt[0]; units.append((sr, vqq, so, nxt[0]) + x); nxt[0] += 16
    for ls in range(2, 8): reg_unit(('q', ls), SWQ, vq, qkv_so(ls), alt)
    for ls in range(8): reg_unit(('k', ls), SWK, vq, qkv_so(ls), alt)
    for ls in range(2, 8): reg_unit(('v', ls), SWV, vq, qkv_so(ls))
    for key in ((0, 2), (0, 3), (1, 0), (1, 1)): reg_unit(('o',) + key, SWO, vq2, wo_so(*key))
    assert nxt[0] == 512
    for ls in range(2): units.append((SWV, vq, qkv_so(ls), ('lds',)))
    for ls in range(2): units.append((SWQ, vq, qkv_so(ls), ('lds',), alt))
    for key in ((0, 0), (0, 1), (1, 2), (1, 3)): units.append((SWO, vq2, wo_so(*key), ('lds',)))
    ST = lc(6)
    W[('v', 0)], W[('v', 1)], W[('q', 0)], W[('q', 1)] = ST, ST + 16, KX, KX + 16
    W[('o', 0, 0)], W[('o', 0, 1)], W[('o', 1, 2)], W[('o', 1, 3)] = ST, ST + 16, ST, ST + 16
    PR = lc(14)
    KMr, VMr = lc(4), lc(5)

    def after_issue():
        g.bar1_arrive(15, vm=32)
        A("v_mov_b32 v14, 0x4444")
        A("v_mov_b32 v15, 0xeeee")
        A("v_and_b32 v13, 0x80, v0")
        A("v_cmp_eq_u32 vcc, 0, v13")
        A(f"v_cndmask_b32 {v(vIdx)}, v15, v14, vcc")
        A(f"s_mov_b64 {s(sLo,2)}, vcc")
        A(f"s_not_b64 {s(sHi,2)}, vcc")
        bf(13, 8, 1)
        A(f"v_mul_u32_u24 {v(vQKw)}, {RS}, v13")
        bf(14, 9, 1)
        A(f"v_lshl_add_u32 {v(vQKw)}, v14, 5, {v(vQKw)}")
        A(f"v_lshl_add_u32 {v(vQKw)}, v12, 6, {v(vQKw)}")
        A(f"v_lshl_add_u32 {v(vQKw)}, v11, 3, {v(vQKw)}")
        A(f"s_lshl_b32 s3, {s(sW)}, 8")
        A(f"s_add_u32 s3, s3, {QT}")
        A(f"v_add_u32 {v(vQKw)}, s3, {v(vQKw)}")
        bf(15, 4, 1)
        A(f"v_mul_u32_u24 {v(vTR)}, {RS}, v15")
        A(f"v_lshl_add_u32 {v(vTR)}, v12, 3, {v(vTR)}")
        bf(15, 8, 2)
        A(f"v_lshl_add_u32 {v(vTR)}, v15, 6, {v(vTR)}")
        A(f"v_add_u32 {v(vTR)}, {QT}, {v(vTR)}")
        A(f"v_lshlrev_b32 {v(vPS)}, 14, v14")
        bf(15, 7, 1)
        A(f"v_lshl_or_b32 {v(vPS)}, v15, 13, {v(vPS)}")
        A(f"v_lshlrev_b32 {v(vOw)}, 3, v15")
        bf(15, 6, 1)
        A(f"v_lshl_or_b32 {v(vPS)}, v15, 12, {v(vPS)}")
        A(f"v_lshl_or_b32 {v(vPS)}, v13, 11, {v(vPS)}")
        A(f"v_lshl_or_b32 {v(vPS)}, v11, 4, {v(vPS)}")
        A("v_and_b32 v15, 0x70, v0")
        A(f"v_or_b32 {v(vOw)}, {v(vOw)}, v15")
        bf(15, 8, 2)
        A(f"v_lshl_or_b32 {v(vOw)}, v15, 7, {v(vOw)}")
        A(f"s_lshl_b32 s3, {s(sW)}, 9")
        A(f"s_add_u32 s3, s3, {OX}")
        A(f"v_add_u32 {v(vOw)}, s3, {v(vOw)}")
        A(f"s_lshl_b32 s3, {s(sW)}, 11")
        A(f"v_add_u32 {v(vMX)}, s3, v0")
        A(f"s_add_u32 {s(sMemRd)}, s3, {MEMR}")
        g.selector(32, 14)
        A(f"ds_write_b128 v0, {v(32,4)} offset:{SELL}")
        A(f"s_mov_b32 {s(sC)}, {hex(CSC)}")
        A(f"s_lshl_b32 s3, {s(sW)}, 16")
        A(f"s_lshl_b32 s4, {s(sH)}, 6")
        A("s_add_u32 s3, s3, s4")
        A(f"s_add_u32 {s(sPartWr)}, s3, {PART}")
        A(f"s_add_u32 {s(sPartW2)}, s3, {PART + 32768}")
        A(f"s_mul_i32 s3, {s(sH)}, {64*24576}")
        A(f"s_lshl_b32 s4, {s(sW)}, 12")
        A("s_add_u32 s3, s3, s4")
        A(f"s_add_u32 {s(sKV)}, s3, {QKV}")
        A(f"s_lshl_b32 s3, {s(sH)}, 19")
        A(f"s_lshl_b32 s4, {s(sW)}, 10")
        A("s_add_u32 s3, s3, s4")
        A(f"s_add_u32 {s(sKVM)}, s3, {KVM - 8192}")
        A(f"s_lshl_b32 s3, {s(sH)}, 8")
        A(f"s_add_u32 {s(sFKV)}, s3, {FKV}")
        A(f"s_add_u32 s3, s3, {s(sW)}")
        A(f"s_add_u32 {s(sFM)}, s3, {FM - 8}")
        A(f"s_mov_b32 {s(sS)}, 0")
        A(f"s_mov_b64 {s(sRdy,2)}, 0")
        A(f"s_lshl_b32 s3, {s(sH)}, 2")
        A(f"s_add_u32 s3, s3, {s(sW)}")
        A("s_lshl_b32 s3, s3, 12")
        A(f"s_add_u32 {s(sDb)}, s3, {DBGW}")
        wait(lgkm=0)
    g.load_units(units, vT, stage=(32, vWL), after_issue=after_issue)
    g.bar1_wait(11, 12)
    A("v_readlane_b32 s3, v11, 2")
    A(f"s_bcnt1_i32_b32 {s(sT)}, s3")
    A("v_and_b32 v11, 0x70, v0")
    A("v_lshlrev_b32 v11, 6, v11")
    A("v_and_b32 v12, 0x300, v0")
    A("v_or_b32 v11, v11, v12")
    bf(12, 7, 1)
    A("v_lshl_or_b32 v11, v12, 4, v11")
    A(f"s_lshl_b32 s3, {s(sW)}, 6")
    for ls in range(2):
        A(f"buffer_load_dwordx4 {v(vA+4*ls,4)}, v11, {srd(SM0)}, s3 offen offset:{ls*32}")
    A("s_mov_b32 s4, 0x05040100")
    A("s_mov_b32 s5, 0x07060302")
    wait(vm=0)
    for ls in range(2):
        i0 = vA + 4 * ls; o = PR + 4 * ls
        A(f"v_perm_b32 {v(o)}, {v(i0+2)}, {v(i0)}, s4")
        A(f"v_perm_b32 {v(o+1)}, {v(i0+2)}, {v(i0)}, s5")
        A(f"v_perm_b32 {v(o+2)}, {v(i0+3)}, {v(i0+1)}, s4")
        A(f"v_perm_b32 {v(o+3)}, {v(i0+3)}, {v(i0+1)}, s5")

    def kv_ready(sbit):
        ok = A.newlabel('kvok')
        A(f"s_bitcmp1_b64 {s(sRdy,2)}, {s(sbit)}")
        A(f"s_cbranch_scc1 {ok}")
        A("v_lshrrev_b32 v11, 2, v0")
        A("s_mov_b32 s4, 0x01010101")
        lp, ex = g.spin_begin()
        A(f"buffer_load_dword {v(vFl)}, v11, {srd(SWS)}, {s(sFKV)} offen sc1")
        wait(vm=0)
        A(f"v_cmp_eq_u32 {s(sRdy,2)}, s4, {v(vFl)}")
        A("s_nop 1")
        A(f"s_bitcmp1_b64 {s(sRdy,2)}, {s(sbit)}")
        A(f"s_cbranch_scc1 {ex}")
        g.spin_end(lp, ex)
        A.label(ok)
    def kv_dma():
        A(f"s_lshl_b32 s3, {s(sW)}, 12")
        A(f"s_add_u32 m0, s3, {KVB}")
        A("s_nop 0")
        for q in range(4):
            A(f"buffer_load_dwordx4 v0, {srd(SWS)}, {s(sKV)} offen offset:{q*1024} sc1 lds")

    def stage_p0():
        for i in range(8): A(f"ds_read_b128 {v(ST+4*i,4)}, {v(vWL)} offset:{i*1024}")
        for i in range(8): A(f"ds_read_b128 {v(KX+4*i,4)}, {v(vWL)} offset:{8192+i*1024}")
        for i in range(16): A(f"v_mov_b32 {v(aQ+i)}, 0")
    def p0b():
        A(f"v_and_b32 {v(lc(3))}, 0xffffff7f, {v(vMX)}")
        for k in range(1, 4): A(f"v_xor_b32 {v(10+k)}, {2048*k}, {v(lc(3))}")
        A(f"s_cmp_ge_u32 {s(sS)}, 1")
        A(f"s_cselect_b32 s6, {s(sKVM)}, {HUGE}")
        A("s_add_u32 s7, s6, 4096")
        A(f"s_cmp_ge_u32 {s(sS)}, 2")
        A(f"s_cselect_b32 {s(sT2)}, {s(sFM)}, {HUGE}")
        A(f"s_add_u32 s4, {s(sS)}, 2")
        A(f"s_add_u32 {s(sPf)}, {s(sKV)}, {2*24576}")
        A(f"s_bitcmp1_b64 {s(sRdy,2)}, s4")
        A(f"s_cselect_b32 {s(sPf)}, {s(sPf)}, {HUGE}")
        A("s_cmp_lt_u32 s4, 64")
        A(f"s_cselect_b32 {s(sPf)}, {s(sPf)}, {HUGE}")

    kv_ready(sS)
    kv_dma()
    stage_p0()
    p0b()
    wait(vm=0, lgkm=0)
    A(f"s_cmp_eq_u32 {s(sT)}, 1")
    if opt.get('slow'): A("s_branch .LokS")
    A("s_cbranch_scc0 .LokS")
    A("s_branch .LokF")

    def loop(tag, st):
        Q = []
        out = []
        def ds(text, tg=None):
            A(text); out.append(tg)
        def dsw(tg):
            if tg not in out: return
            i = len(out) - 1 - out[::-1].index(tg)
            n = len(out) - 1 - i
            wait(lgkm=min(n, 15))
            del out[:len(out) - min(n, 15)]
        def dsall():
            wait(lgkm=0); del out[:]
        def emit(f):
            if callable(f): f()
            else: A(f)
        def F(*fs): Q.extend(fs)
        def pop(n):
            for _ in range(n):
                if Q: emit(Q.pop(0))
        def flush(): pop(len(Q))
        def M(f, n=2):
            f(); pop(n)
        def rdf(dst, addr, off, tg): return lambda: ds(f"ds_read_b128 {v(dst,4)}, {v(addr)} offset:{off}", tg)
        def trf(dst, off, tg): return lambda: ds(f"ds_read_b64_tr_b16 {v(dst,2)}, {v(vTR)} offset:{off}", tg)
        def cv(d, x): return f"v_cvt_pk_bf16_f32 {v(d)}, {v(x)}, {v(x+1)}"

        top = f".Ltop{tag}"
        A.label(top)
        lp, ex = g.spin_begin()
        for u in range(2):
            A(f"buffer_load_dwordx4 {v(PR+4*u,4)}, v0, {srd(SWS)}, {s(sMemRd)} offen offset:{u*1024} sc1")
        wait(vm=0)
        A(f"v_max3_u32 v14, {v(PR)}, {v(PR+1)}, {v(PR+2)}")
        A(f"v_max3_u32 v15, {v(PR+3)}, {v(PR+4)}, {v(PR+5)}")
        A(f"v_max3_u32 v14, v14, {v(PR+6)}, {v(PR+7)}")
        A("v_max_u32 v14, v14, v15")
        A("v_cmp_eq_u32 vcc, -1, v14")
        A(f"s_cbranch_vccz {ex}")
        g.spin_end(lp, ex)
        A.label(f".Lok{tag}")
        g.stamp(0)
        ds(f"ds_write_b128 {v(vMX)}, {v(PR,4)}", 'w')
        ds(f"ds_write_b128 {v(vMX)}, {v(PR+4,4)} offset:1024", 'w')
        def mxr(i):
            k = i // 4
            addr = lc(3) if k == 0 else 10 + k
            return rdf(lc(i), addr, ((i % 4) // 2) * 1024 + (i % 2) * 128, ('a', i))
        for i in range(4): mxr(i)()
        VA = {0: PR, 1: PR + 4}
        for ls in range(2, 8): VA[ls] = lc(2 + ls)
        def Vs(ls, t): return lambda: smf(aV + 4 * t, VA[ls], W[('v', ls)] + 8 * t, vIdx)
        def QKs(m, acc, i): return lambda: smf(acc, lc(i), W[(m, i // 2)] + 8 * (i % 2), vIdx)
        F(f"buffer_store_dwordx4 {v(KMr,4)}, v0, {srd(SWS)}, s6 offen sc1",
          f"buffer_store_dwordx4 {v(VMr,4)}, v0, {srd(SWS)}, s7 offen sc1",
          "v_lshlrev_b32 v14, 2, v0", "v_lshrrev_b32 v15, 2, v0")
        M(Vs(0, 0), 1); M(Vs(0, 1), 1); M(Vs(1, 0), 2); M(Vs(1, 1), 0)
        dsw('w')
        A("s_barrier")
        for i in range(4, 8): mxr(i)()
        A(f"buffer_load_dword {v(vFl)}, v14, {srd(SWS)}, {s(sPf)} offen sc1")
        A(f"buffer_load_dword {v(vFl)}, v15, {srd(SWS)}, {s(sFKV)} offen sc1")
        g.stamp(1)
        F(*[mxr(i) for i in range(8, 16)])
        F("v_mov_b32 v14, 1", f"buffer_store_byte v14, off, {srd(SWS)}, {s(sT2)} sc1")
        for i in range(16):
            if i % 2 == 0: dsw(('a', i + 1))
            if i == 4:
                M(QKs('q', aQ, i), 1)
                F(*[rdf(KX + 4 * j, 0, KVB + j * 1024, 'kx') for j in range(8)])
                F(*[f"v_xor_b32 {v(10+k)}, {2048*k}, {v(vMX)}" for k in range(1, 4)])
            else:
                M(QKs('q', aQ, i), 2 if i % 2 else 1)
        flush()
        g.stamp(2)
        QF = lc(0)
        for i in range(16):
            M(QKs('k', aK, i))
            if i == 1:
                A(cv(14, aQ)); A(cv(15, aQ + 2))
                ds(f"ds_write_b64 {v(vQKw)}, {v(14,2)}", 'w')
            if i == 5:
                dsw('w')
                A("s_barrier")
                F(*[trf(QF + 2 * j, (j // 2) * 256 + (j % 2) * 32, 'qf') for j in range(8)])
            if i == 9:
                F(*[rdf(VA[ls], 10 + ls // 2, (ls % 2) * 1024, ('va', ls)) for ls in range(2, 8)])
            if i == 11:
                F(f"s_lshl_b32 s3, {s(sW)}, 11", "v_add_u32 v14, s3, v0")
        VX, SXa, ONE = lc(10), lc(12), lc(14)
        F(rdf(VX, 14, KVB + 8192, 'vx'), rdf(VX + 4, 14, KVB + 8192 + 1024, 'vx'))
        flush()
        dsw('qf')
        g.stamp(3)
        def SX(tau, ks): return lambda: mfma(SXa + 4 * tau, KX + 16 * tau + 4 * ks, QF + 4 * ks, None if ks == 0 else SXa + 4 * tau)
        KF = KX
        F(*[f"v_mov_b32 {v(ONE+i)}, 0x3f803f80" for i in range(4)])
        for i in range(8):
            M(SX(i // 4, i % 4))
            if i == 1:
                A(cv(14, aK)); A(cv(15, aK + 2))
                ds(f"ds_write_b64 {v(vQKw)}, {v(14,2)} offset:{KT-QT}", 'w')
                F(*[f"v_mov_b32 {v(aQ+i)}, 0" for i in range(4)])
            if i == 5:
                dsw('w')
                A("s_barrier")
                F(*[trf(KF + 2 * j, KT - QT + (j // 2) * 256 + (j % 2) * 32, 'kf') for j in range(8)])
        PX, OX0, OX1, SM_ = KX + 16, KX + 20, KX + 24, KX + 28
        PM, OM, SUM = aQ, aK, lc(15)
        def xred(r, t, op, sws):
            o = []
            for sw in sws:
                o += [f"v_mov_b32 {v(t)}, {v(r)}", f"v_permlane{sw}_swap_b32 {v(t)}, {v(r)}", f"{op} {v(r)}, {v(r)}, {v(t)}"]
            return o
        F(f"v_max3_f32 v11, {v(SXa)}, {v(SXa+1)}, {v(SXa+2)}",
          f"v_max3_f32 v12, {v(SXa+3)}, {v(SXa+4)}, {v(SXa+5)}",
          f"v_max3_f32 v11, v11, {v(SXa+6)}, {v(SXa+7)}",
          "v_max_f32 v11, v11, v12")
        F(*xred(11, 12, 'v_max_f32', ('16', '32')))
        F(f"v_mul_f32 v11, {s(sC)}, v11")
        F(*[f"v_fma_f32 {v(SXa+i)}, {v(SXa+i)}, {s(sC)}, -v11" for i in range(8)])
        F(*[f"v_exp_f32 {v(SXa+i)}, {v(SXa+i)}" for i in range(8)])
        F(*[cv(PX + i, SXa + 2 * i) for i in range(4)])
        vlist = [(ls, t) for ls in range(2, 8) for t in range(2)]
        NV1 = opt.get('nv1', 4)
        for (ls, t) in vlist[:NV1]: M(Vs(ls, t), 2)
        dsw('kf')
        g.stamp(4)
        for ks in range(4): M(lambda ks=ks: mfma(SM_, KF + 4 * ks, QF + 4 * ks, None if ks == 0 else SM_), 3)
        rest = vlist[NV1:]
        M(Vs(*rest[0]), 3); M(Vs(*rest[1]), 3)
        mq = [f"v_max3_f32 v13, {v(SM_)}, {v(SM_+1)}, {v(SM_+2)}", f"v_max_f32 v13, v13, {v(SM_+3)}"]
        mq += xred(13, 14, 'v_max_f32', ('16',))
        flush()
        M(lambda: mfma(OX0, VX, PX, None), 0)
        F(*mq)
        M(lambda: mfma(OX1, VX + 4, PX, None), 3)
        M(lambda: mfma(SUM, ONE, PX, None), 2)
        F(f"v_mul_f32 v13, {s(sC)}, v13", "v_max_f32 v13, v13, v11")
        F(*[f"v_fma_f32 {v(SM_+i)}, {v(SM_+i)}, {s(sC)}, -v13" for i in range(4)])
        F("v_sub_f32 v11, v11, v13")
        F(*[f"v_exp_f32 {v(SM_+i)}, {v(SM_+i)}" for i in range(4)])
        F("v_exp_f32 v11, v11")
        for (ls, t) in rest[2:]: M(Vs(ls, t), 2)
        flush()
        A(f"s_mov_b64 exec, {s(sLo,2)}")
        A(cv(PM, SM_)); A(cv(PM + 1, SM_ + 2))
        A(f"s_mov_b64 exec, {s(sHi,2)}")
        A(cv(PM + 2, SM_)); A(cv(PM + 3, SM_ + 2))
        A("s_mov_b64 exec, -1")
        A(f"v_add_f32 v13, {v(SM_)}, {v(SM_+1)}")
        A(f"v_add_f32 v14, {v(SM_+2)}, {v(SM_+3)}")
        for i in range(4): A(cv(VMr + i, aV + 2 * i))
        A("v_add_f32 v13, v13, v14")
        A("v_mov_b32 v14, v13")
        mfma(OM, VMr, PM, None)
        A(f"s_cmp_eq_u32 {s(sS)}, 63")
        A("v_permlane16_swap_b32 v14, v13")
        A("s_cbranch_scc1 .Lrecend")
        A("v_add_f32 v13, v13, v14")
        A(f"v_fma_f32 v12, {v(SUM)}, v11, v13")
        A("v_rcp_f32 v12, v12")
        for i in range(4): A(f"v_cndmask_b32 {v(OX0+i)}, {v(OX0+i)}, {v(OX1+i)}, {s(sHi,2)}")
        for i in range(4): A(f"v_fma_f32 {v(OM+i)}, {v(OX0+i)}, v11, {v(OM+i)}")
        for i in range(4): A(f"v_mul_f32 {v(OM+i)}, {v(OM+i)}, v12")
        A(cv(14, OM)); A(cv(15, OM + 2))
        ds(f"ds_write_b64 {v(vOw)}, {v(14,2)}", 'w')
        for i in range(8): rdf(ST + 4 * i, vWL, 16384 + i * 1024, 'st')()
        A("v_and_b32 v11, 0xffffff7f, v0")
        AC = lc(0)
        for i in range(8): A(f"v_mov_b32 {v(AC+i)}, 0")
        dsw('w')
        A("s_barrier")
        OA = KX
        for ch in range(4): rdf(OA + 4 * ch, 11, OX + (ch // 2) * 1024 + (ch % 2) * 128, ('o', ch))()
        for i in range(8, 16): A(f"v_mov_b32 {v(AC+i)}, 0")
        g.stamp(5)
        def O(u, ch, z): return lambda: smf(AC + 8 * u + 4 * z, OA + 4 * ch, W[('o', u, ch)] + 8 * z, vIdx)
        PK = KX + 16
        for u in range(2):
            for ch in range(4):
                if u == 0: dsw(('o', ch))
                if u == 1 and ch >= 2: dsw(('rf', ch))
                M(O(u, ch, 0)); M(O(u, ch, 1))
                if u == 0 and ch < 2:
                    F(*[rdf(ST + 16 * ch + 4 * i, vWL, 24576 + ch * 4096 + i * 1024, ('rf', ch + 2)) for i in range(4)])
                if u == 1 and ch == 0:
                    F(*[cv(PK + i, AC + 2 * i) for i in range(4)])
                    F(f"buffer_store_dwordx4 {v(PK,4)}, {v(vPS)}, {srd(SWS)}, {s(sPartWr)} offen{st}")
        flush()
        for i in range(4): A(cv(PK + 4 + i, AC + 8 + 2 * i))
        A(f"buffer_store_dwordx4 {v(PK+4,4)}, {v(vPS)}, {srd(SWS)}, {s(sPartW2)} offen{st}")
        g.stamp(6)
        RD, RA, SEL, NEG = lc(0), lc(2), lc(3), lc(14)
        A(f"s_and_b32 s3, {s(sS)}, 3")
        A("s_lshl_b32 s3, s3, 13")
        A(f"s_add_u32 {s(sMemRst)}, {s(sMW0)}, s3")
        A(f"s_add_u32 {s(sS)}, {s(sS)}, 1")
        A(f"s_add_u32 {s(sKV)}, {s(sKV)}, 24576")
        kv_ready(sS)
        kv_dma()
        A(f"ds_read_b128 {v(SEL,4)}, v0 offset:{SELL}")
        A(f"s_lshl_b32 s3, {s(sW)}, 8")
        A(f"v_add_u32 v11, s3, {v(vTR)}")
        for z in range(2):
            A(f"ds_read_b64_tr_b16 {v(KMr+2*z,2)}, v11 offset:{KT-QT+z*32}")
        A(f"s_and_b32 s3, {s(sS)}, 3")
        A("s_lshl_b32 s3, s3, 13")
        A(f"s_add_u32 {s(sMemWr)}, {s(sMW0)}, s3")
        A(f"s_andn2_b32 {s(sMemRd)}, {s(sMemRd)}, 0x6000")
        A(f"s_or_b32 {s(sMemRd)}, {s(sMemRd)}, s3")
        stage_p0()
        for i in range(4): A(f"v_mov_b32 {v(NEG+i)}, -1")
        lp, ex = g.spin_begin()
        for u in range(2):
            A(f"buffer_load_dwordx4 {v(RD+4*u,4)}, {v(vPL)}, {srd(SWS)}, {s(sPartRd)} offen offset:{u*1024} sc1")
        wait(vm=1, lgkm=0)
        mfma(RA, RD, SEL, None)
        wait(vm=0)
        mfma(RA, RD + 4, SEL, RA)
        A(f"v_add_f32 v11, {v(RA)}, {v(RA+1)}")
        A(f"v_add_f32 v12, {v(RA+2)}, {v(RA+3)}")
        A("v_add_f32 v11, v11, v12")
        A("v_cmp_u_f32 vcc, v11, v11")
        A("v_mov_b32_dpp v12, v11 row_ror:4 row_mask:0xf bank_mask:0xf")
        A(f"s_cbranch_vccz {ex}")
        g.spin_end(lp, ex)
        cvt(11, 11, 12)
        A(f"buffer_store_dword v11, {v(vMS)}, {srd(SWS)}, {s(sMemWr)} offen{st}")
        g.stamp(7)
        for u in range(2):
            A(f"buffer_store_dwordx4 {v(NEG,4)}, {v(vPL)}, {srd(SWS)}, {s(sPartRd)} offen offset:{u*1024}{st}")
        A(f"buffer_store_dword {v(NEG)}, {v(vMS)}, {srd(SWS)}, {s(sMemRst)} offen{st}")
        A("s_mov_b32 s4, 0x01010101")
        A(f"v_cmp_eq_u32 {s(sRdy,2)}, s4, {v(vFl)}")
        A(f"s_xor_b32 {s(sPartWr)}, {s(sPartWr)}, 0x40000")
        A(f"s_xor_b32 {s(sPartW2)}, {s(sPartW2)}, 0x40000")
        A(f"s_xor_b32 {s(sPartRd)}, {s(sPartRd)}, 0x40000")
        A(f"s_add_u32 {s(sKVM)}, {s(sKVM)}, 8192")
        A(f"s_add_u32 {s(sFM)}, {s(sFM)}, 4")
        g.stamp_flush(12, 13, sDb)
        A(f"s_add_u32 {s(sDb)}, {s(sDb)}, 64")
        p0b()
        A(f"s_branch {top}")

    loop('F', '')
    loop('S', ' sc1')
    A.label('.Lrecend')
    A(f"s_lshl_b32 s3, {s(sW)}, 8")
    A(f"v_add_u32 v11, s3, {v(vTR)}")
    for z in range(2):
        A(f"ds_read_b64_tr_b16 {v(KMr+2*z,2)}, v11 offset:{KT-QT+z*32}")
    A(f"s_add_u32 s6, {s(sKVM)}, 8192")
    A(f"s_add_u32 s7, {s(sKVM)}, {8192+4096}")
    A(f"buffer_store_dwordx4 {v(VMr,4)}, v0, {srd(SWS)}, s7 offen sc1")
    wait(lgkm=0)
    A(f"buffer_store_dwordx4 {v(KMr,4)}, v0, {srd(SWS)}, s6 offen sc1")
    A("v_mov_b32 v12, 1")
    wait(vm=2)
    A("s_mov_b64 exec, 1")
    A(f"buffer_store_byte v12, off, {srd(SWS)}, {s(sFM)} offset:4 sc1")
    wait(vm=1)
    A(f"buffer_store_byte v12, off, {srd(SWS)}, {s(sFM)} offset:8 sc1")
    A("s_branch .Lend")
```

```python
import sys, os
sys.path.insert(0, os.path.dirname(os.path.abspath(__file__)))
from asmlib import *

NAME = 'parallel_sum__memory_aug_recurrent_mem_tr__swiglu_ffn__prompt'

XN   = 0x0
QKV  = 0x200000
KVM  = 0x3200000
PB   = 0x4200000
NP   = 46
FLG  = 0xA000000
FKV  = FLG
FM   = FLG + 0x2000
FP   = FLG + 0x10000
MEMR = 0xA100000
PART = 0xA200000
DBGW = 0xA400000
WSZ  = 0xA800000
HUGE = 0x3ff00000

SX, SM0, SWQ, SWK, SWV, SWO, SWG, SWU, SWD, SOUT, SDBG, SWS = [8 + 4 * i for i in range(12)]
def srd(b): return s(b, 4)
sW, sSlot, sDead, sCnt, sXcc, sLB = 56, 57, 58, 59, 60, 61
LDS_BYTES = 163840
SPIN = 40000

LOG2E = 1.4426950408889634
import struct
def f2u(x): return struct.unpack('<I', struct.pack('<f', x))[0]
CSC = f2u((128 ** -0.5) * LOG2E)

class Gen:
    def __init__(self, opt):
        self.A = Asm()
        self.opt = opt

    def mfma(self, D, Aop, Bop, C):
        c = '0' if C is None else R(C, 4)
        self.A(f"v_mfma_f32_16x16x32_bf16 {R(D,4)}, {R(Aop,4)}, {R(Bop,4)}, {c}")
    def smf(self, D, Aop, Bop, idx):
        self.A(f"v_smfmac_f32_16x16x64_bf16 {R(D,4)}, {R(Aop,4)}, {R(Bop,8)}, {v(idx)}")
    def cvt(self, d, x, y):
        self.A(f"v_cvt_pk_bf16_f32 {v(d)}, {v(x)}, {v(y)}")
    def wait(self, vm=None, lgkm=None):
        p = []
        if vm is not None: p.append(f"vmcnt({vm})")
        if lgkm is not None: p.append(f"lgkmcnt({lgkm})")
        self.A("s_waitcnt " + " ".join(p))
    def spin_begin(self):
        A = self.A
        lp, ex = A.newlabel('spin'), A.newlabel('spinx')
        A(f"s_mov_b32 {s(sCnt)}, {SPIN}")
        A(f"s_cmp_lg_u32 {s(sDead)}, 0")
        A(f"s_cselect_b32 {s(sCnt)}, 1, {s(sCnt)}")
        A.label(lp)
        return lp, ex
    def spin_end(self, lp, ex):
        A = self.A
        A(f"s_sub_u32 {s(sCnt)}, {s(sCnt)}, 1")
        A(f"s_cmp_lg_u32 {s(sCnt)}, 0")
        A(f"s_cbranch_scc1 {lp}")
        A(f"s_mov_b32 {s(sDead)}, 1")
        A.label(ex)
    def stamp(self, idx, vt=None, ssoff=None):
        if not self.opt.get('stamps'): return
        sel = self.opt.get('sel', 0)
        if idx >= 100:
            if idx // 100 != sel: return
            idx %= 100
        self.A(f"s_memtime {s(86+2*idx,2)}")
    def stamp_flush(self, vt, vt2, ssoff):
        if not self.opt.get('stamps'): return
        A = self.A
        A("s_waitcnt lgkmcnt(0)")
        for i in range(8):
            A(f"v_writelane_b32 {v(vt)}, {s(86+2*i)}, {i}")
        A(f"v_lshrrev_b32 {v(vt2)}, 2, v0")
        A("s_mov_b64 exec, 0xff")
        A(f"buffer_store_dword {v(vt)}, {v(vt2)}, {srd(SWS)}, {s(ssoff)} offen")
        A("s_mov_b64 exec, -1")

    def prologue(self):
        A = self.A
        offs = [0, 8, 16, 24, 32, 40, 64, 72, 80, 88, 96, 104]
        sizes = [2097152, 8192, 4194304, 4194304, 4194304, 4194304, 1835008, 1835008, 1835008, 2097152, 256, WSZ]
        for i, o in enumerate(offs):
            A(f"s_load_dwordx2 {s(8+4*i,2)}, s[0:1], {o}")
        A("v_lshrrev_b32 v1, 6, v0")
        A("v_and_b32 v2, 63, v0")
        A(f"s_getreg_b32 {s(sXcc)}, hwreg(HW_REG_XCC_ID)")
        A(f"v_readfirstlane_b32 {s(sW)}, v1")
        A(f"s_and_b32 {s(sXcc)}, {s(sXcc)}, 7")
        for i, z in enumerate(sizes):
            A(f"s_mov_b32 {s(10+4*i)}, {z}")
            A(f"s_mov_b32 {s(11+4*i)}, 0x20000")
        A(f"s_mov_b32 {s(sDead)}, 0")
        A(f"s_lshl_b32 {s(sLB)}, {s(sW)}, 15")
        A("v_lshlrev_b32 v0, 4, v2")
        A("v_mov_b32 v3, 0x3ff0")
        self.wait(lgkm=0)
        skip = A.newlabel('tk')
        A(f"s_cmp_lg_u32 {s(sW)}, 0")
        A(f"s_cbranch_scc1 {skip}")
        A("s_mov_b64 exec, 1")
        A(f"s_mov_b32 s3, {s(sXcc)}")
        A("s_mov_b32 s4, 8")
        lp, got = A.newlabel('tkl'), A.newlabel('tkg')
        A.label(lp)
        A("v_mov_b32 v4, 1")
        A("s_lshl_b32 s5, s3, 5")
        A(f"buffer_atomic_add v4, off, {srd(SDBG)}, s5 sc0 sc1")
        self.wait(vm=0)
        A("v_readfirstlane_b32 s6, v4")
        A("s_add_u32 s7, s5, s6")
        A("s_cmp_lt_u32 s6, 32")
        A(f"s_cbranch_scc1 {got}")
        A("s_add_u32 s3, s3, 1")
        A("s_and_b32 s3, s3, 7")
        A("s_sub_u32 s4, s4, 1")
        A("s_cmp_lg_u32 s4, 0")
        A(f"s_cbranch_scc1 {lp}")
        A("s_mov_b32 s7, -1")
        A.label(got)
        A("v_mov_b32 v4, s7")
        A("ds_write_b32 v3, v4")
        A("s_mov_b64 exec, -1")
        self.wait(lgkm=0)
        A.label(skip)
        A("s_barrier")
        A("ds_read_b32 v4, v3")
        self.wait(lgkm=0)
        A(f"v_readfirstlane_b32 {s(sSlot)}, v4")
        A(f"s_cmp_eq_u32 {s(sSlot)}, -1")
        A("s_cbranch_scc1 .Lend")
        A(f"s_cmp_lt_u32 {s(sSlot)}, 32")
        A("s_cbranch_scc1 .Lrec")

    def reset_flags(self, vz, vt):
        A = self.A
        sk = A.newlabel('rf')
        A(f"s_cmp_lg_u32 {s(sW)}, 0")
        A(f"s_cbranch_scc1 {sk}")
        A(f"v_mov_b32 {v(vz)}, 0")
        A(f"v_mov_b32 {v(vz+1)}, 0")
        A(f"v_lshrrev_b32 {v(vt)}, 1, v0")
        A(f"s_lshl_b32 s3, {s(sSlot)}, 9")
        A(f"s_add_u32 s3, s3, {FLG}")
        A(f"buffer_store_dwordx2 {v(vz,2)}, {v(vt)}, {srd(SWS)}, s3 offen sc1")
        A.label(sk)

    def bar1_arrive(self, vt, vm=0):
        A = self.A
        self.wait(vm=vm)
        A("s_barrier")
        sk = A.newlabel('ba')
        A(f"s_cmp_lg_u32 {s(sW)}, 0")
        A(f"s_cbranch_scc1 {sk}")
        A("s_mov_b64 exec, 1")
        A(f"v_mov_b32 {v(vt)}, 1")
        A(f"s_and_b32 s3, {s(sSlot)}, 0xe0")
        A(f"buffer_atomic_add {v(vt)}, off, {srd(SDBG)}, s3 offset:4 sc1")
        A("s_mov_b64 exec, -1")
        A.label(sk)

    def bar1_wait(self, vt, va):
        A = self.A
        A(f"v_lshrrev_b32 {v(va)}, 2, v0")
        A("s_mov_b32 s6, 0x02020202")
        A("s_mov_b32 s7, 0x02020202")
        lp, ex = self.spin_begin()
        A(f"buffer_load_dword {v(vt)}, {v(va)}, {srd(SDBG)}, 0 offen sc1")
        self.wait(vm=0)
        A(f"v_cmp_eq_u32 vcc, 32, {v(vt)}")
        A("s_and_b64 s[4:5], vcc, s[6:7]")
        A("s_cmp_eq_u64 s[4:5], s[6:7]")
        A(f"s_cbranch_scc1 {ex}")
        self.spin_end(lp, ex)

    def tr_addr(self, vt, tmp):
        A = self.A
        A(f"v_and_b32 {v(vt)}, 0xf0, v0")
        A(f"v_and_b32 {v(tmp)}, 0x300, v0")
        A(f"v_lshlrev_b32 {v(tmp)}, 1, {v(tmp)}")
        A(f"v_add3_u32 {v(vt)}, {v(vt)}, {v(tmp)}, {s(sLB)}")

    def dma_voffs(self, vq, rowmap, stride, qrows, swave_shift, tmp):
        A = self.A
        first = True
        for sb in range(4):
            db = rowmap[sb]
            if isinstance(db, tuple): continue
            A(f"v_bfe_u32 {v(tmp)}, v0, {6+sb}, 1")
            if first:
                A(f"v_lshlrev_b32 {v(vq)}, {db}, {v(tmp)}"); first = False
            else:
                A(f"v_lshl_or_b32 {v(vq)}, {v(tmp)}, {db}, {v(vq)}")
        A(f"s_mov_b32 s3, {stride}")
        A(f"v_mul_lo_u32 {v(vq)}, {v(vq)}, s3")
        for sb in range(4):
            db = rowmap[sb]
            if isinstance(db, tuple):
                A(f"v_bfe_u32 {v(tmp)}, v0, {6+sb}, 1")
                A(f"v_lshl_add_u32 {v(vq)}, {v(tmp)}, {db[1]}, {v(vq)}")
        A(f"v_and_b32 {v(tmp)}, 0x30, v0")
        A(f"s_lshl_b32 s3, {s(sW)}, {swave_shift}")
        A(f"v_add3_u32 {v(vq)}, {v(vq)}, {v(tmp)}, s3")
        for q in range(1, 4):
            A(f"v_add_u32 {v(vq+q)}, {q*(qrows*stride-1024)}, {v(vq)}")

    def load_units(self, units, vt, stage=None, after_issue=None):
        A = self.A
        n = len(units)
        def issue(k):
            sr, vq, so, dst = units[k][:4]
            slot = k % 8
            A(f"s_add_u32 m0, {s(sLB)}, {slot*4096}")
            so()
            for q in range(4):
                A(f"buffer_load_dwordx4 {v(vq+q)}, {srd(sr)}, s3 offen offset:{q*1024} lds")
        for k in range(min(8, n)): issue(k)
        if after_issue: after_issue()
        for k in range(n):
            sr, vq, so, dst = units[k][:4]
            va, tstep = units[k][4] if len(units[k]) > 4 else (vt, 8)
            slot = k % 8
            rem = min(7, n - 1 - k)
            self.wait(vm=4 * rem)
            base = stage[0] if isinstance(dst, tuple) else dst
            for t in range(2):
                for hh in range(2):
                    for y in range(2):
                        A(f"ds_read_b64_tr_b16 {R(base+8*t+4*hh+2*y,2)}, {v(va)} offset:{slot*4096+hh*2048+y*256+t*tstep}")
            if isinstance(dst, tuple):
                self.wait(lgkm=0)
                for i in range(4):
                    A(f"ds_write_b128 {v(stage[1])}, {R(base+4*i,4)} offset:{slot*4096+i*1024}")
            if k + 8 < n:
                self.wait(lgkm=0)
                issue(k + 8)
        self.wait(lgkm=0)

    def selector(self, vs, tmp):
        A = self.A
        A(f"v_bfe_u32 {v(tmp)}, v0, 4, 1")
        A(f"v_lshlrev_b32 {v(tmp)}, 4, {v(tmp)}")
        A(f"v_mov_b32 {v(tmp+1)}, 0x3f80")
        A(f"v_lshlrev_b32 {v(tmp+1)}, {v(tmp)}, {v(tmp+1)}")
        A(f"v_bfe_u32 {v(tmp)}, v0, 5, 2")
        for i in range(4):
            A(f"v_cmp_eq_u32 vcc, {i}, {v(tmp)}")
            A(f"v_cndmask_b32 {v(vs+i)}, 0, {v(tmp+1)}, vcc")

    def ln(self):
        A = self.A
        sB = 62
        sk = A.newlabel('ln')
        A(f"s_cmp_ge_u32 {s(sB)}, 128")
        A(f"s_cbranch_scc1 {sk}")
        A(f"s_lshl_b32 s3, {s(sB)}, 2")
        A(f"s_add_u32 s3, s3, {s(sW)}")
        A("s_lshl_b32 s4, s3, 12")
        A("v_and_b32 v4, 0xf0, v0")
        A("v_and_b32 v5, 0x300, v0")
        A("v_lshl_or_b32 v4, v5, 2, v4")
        for u in range(4):
            A(f"buffer_load_dwordx4 {v(16+4*u,4)}, v4, {srd(SX)}, s4 offen offset:{u*256}")
        A("v_bfe_u32 v6, v0, 6, 2")
        A("v_lshlrev_b32 v6, 11, v6")
        A("v_bfe_u32 v7, v0, 4, 2")
        A("v_lshl_or_b32 v6, v7, 8, v6")
        A("v_lshrrev_b32 v7, 4, v5")
        A("v_or_b32 v6, v6, v7")
        A("s_lshr_b32 s5, s3, 3")
        A("s_lshl_b32 s5, s5, 15")
        A("s_and_b32 s6, s3, 1")
        A("s_lshl_b32 s6, s6, 10")
        A("s_add_u32 s5, s5, s6")
        A("s_bfe_u32 s6, s3, 0x20001")
        A("s_lshl_b32 s6, s6, 6")
        A("s_add_u32 s5, s5, s6")
        if XN: A(f"s_add_u32 s5, s5, {XN}")
        A("s_mov_b32 s6, 0xffff0000")
        self.wait(vm=0)
        X = 32
        for i in range(16):
            A(f"v_lshlrev_b32 {v(X+2*i)}, 16, {v(16+i)}")
            A(f"v_and_b32 {v(X+2*i+1)}, s6, {v(16+i)}")
        def rowsum(r):
            for sh in (8, 4, 2, 1):
                A(f"v_add_f32_dpp {v(r)}, {v(r)}, {v(r)} row_ror:{sh} row_mask:0xf bank_mask:0xf")
        for k in range(4):
            A(f"v_add_f32 {v(8+k)}, {v(X+k)}, {v(X+4+k)}")
        for i in range(2, 8):
            for k in range(4):
                A(f"v_add_f32 {v(8+k)}, {v(8+k)}, {v(X+4*i+k)}")
        A("v_add_f32 v8, v8, v9"); A("v_add_f32 v10, v10, v11"); A("v_add_f32 v8, v8, v10")
        rowsum(8)
        A(f"v_mul_f32 v8, {1/512}, v8")
        for i in range(32):
            A(f"v_sub_f32 {v(64+i)}, {v(X+i)}, v8")
        for k in range(4):
            A(f"v_mul_f32 {v(10+k)}, {v(64+k)}, {v(64+k)}")
        for i in range(1, 8):
            for k in range(4):
                A(f"v_fmac_f32 {v(10+k)}, {v(64+4*i+k)}, {v(64+4*i+k)}")
        A("v_add_f32 v10, v10, v11"); A("v_add_f32 v12, v12, v13"); A("v_add_f32 v10, v10, v12")
        rowsum(10)
        A(f"v_mul_f32 v10, {1/512}, v10")
        self.cvt(9, 8, 10)
        A("v_lshlrev_b32 v8, 16, v9")
        A("v_and_b32 v10, s6, v9")
        A(f"v_add_f32 v10, {hex(f2u(1e-5))}, v10")
        self.cvt(10, 10, 10)
        A("v_and_b32 v10, s6, v10")
        A("v_sqrt_f32 v10, v10")
        self.cvt(10, 10, 10)
        A("v_and_b32 v10, s6, v10")
        A("v_rcp_f32 v10, v10")
        for i in range(32):
            A(f"v_sub_f32 {v(64+i)}, {v(X+i)}, v8")
        for i in range(16):
            self.cvt(16+i, 64+2*i, 64+2*i+1)
        for i in range(16):
            A(f"v_lshlrev_b32 {v(X+2*i)}, 16, {v(16+i)}")
            A(f"v_and_b32 {v(X+2*i+1)}, s6, {v(16+i)}")
        for i in range(32):
            A(f"v_mul_f32 {v(X+i)}, {v(X+i)}, v10")
        for i in range(16):
            self.cvt(16+i, X+2*i, X+2*i+1)
        for u in range(4):
            A(f"buffer_store_dwordx4 {v(16+4*u,4)}, v6, {srd(SWS)}, s5 offen sc1")
            if u < 3: A("s_add_u32 s5, s5, 8192")
        A.label(sk)

    def xn_dma(self, sseg, sbuf):
        A = self.A
        A(f"s_lshl_b32 s3, {s(sseg)}, 15")
        A(f"s_lshl_b32 s4, {s(sW)}, 13")
        A("s_add_u32 s3, s3, s4")
        A(f"s_add_u32 m0, {s(sbuf)}, s4")
        if XN: A(f"s_add_u32 s3, s3, {XN}")
        for hlf in range(2):
            for q in range(4):
                A(f"buffer_load_dwordx4 v0, {srd(SWS)}, s3 offen offset:{q*1024} sc1 lds")
            if hlf == 0:
                A("s_add_u32 m0, m0, 4096")
                A("s_add_u32 s3, s3, 4096")

    def gemm1(self, mats, vXA, XB, mid=None):
        A = self.A
        def rd(ks):
            for tau in range(2):
                A(f"ds_read_b128 {v(XB+8*(ks%4)+4*tau,4)}, {v(vXA)} offset:{ks*2048+tau*1024}")
        rd(0); rd(1); rd(2)
        for ks in range(16):
            if ks + 3 < 16: rd(ks + 3)
            left = min(3, 15 - ks)
            self.wait(lgkm=2 * left)
            for (wb, ab, tr) in mats:
                for t in range(2):
                    for tau in range(2):
                        w_ = wb + (ks // 2) * 16 + 8 * t + 4 * (ks % 2)
                        x_ = XB + 8 * (ks % 4) + 4 * tau
                        d = ab + 8 * t + 4 * tau
                        c = None if ks == 0 else d
                        if tr: self.mfma(d, w_, x_, c)
                        else: self.mfma(d, x_, w_, c)
            if mid and ks == mid[0]: mid[1]()

    def proj(self, W2, vAct, AF, ACC, PK, sP):
        A = self.A
        for ks in range(4):
            for tau in range(2):
                A(f"ds_read_b128 {v(AF+16*tau+4*ks,4)}, {v(vAct)} offset:{tau*4096+ks*1024}")
        def epi(tp):
            ab = ACC + 16 * (tp % 2)
            for tau in range(2):
                pk = PK + 8 * (tp % 2) + 4 * tau
                for t in range(2):
                    d = ab + 8 * t + 4 * tau
                    self.cvt(pk + 2 * t, d, d + 1)
                    self.cvt(pk + 2 * t + 1, d + 2, d + 3)
                A(f"s_add_u32 s3, {s(sP)}, {(tp*2+tau)*NP*1024}")
                A(f"buffer_store_dwordx4 {v(pk,4)}, v0, {srd(SWS)}, s3 offen sc1")
        for tp in range(4):
            ab = ACC + 16 * (tp % 2)
            for ks in range(4):
                if tp == 0: self.wait(lgkm=6 - 2 * ks)
                for t in range(2):
                    for tau in range(2):
                        w_ = W2 + (tp * 2 + ks // 2) * 16 + 8 * t + 4 * (ks % 2)
                        d = ab + 8 * t + 4 * tau
                        self.mfma(d, w_, AF + 16 * tau + 4 * ks, None if ks == 0 else d)
                if ks == 1 and tp > 0: epi(tp - 1)
        epi(3)

    def bulk(self):
        A = self.A
        opt = self.opt
        sB, sH, sJ, sSeg, sBuf, sNx, sFl, sP, sFb, sT = 62, 63, 64, 65, 66, 67, 68, 69, 70, 71
        ACT = 65536
        A(f"s_sub_u32 {s(sB)}, {s(sSlot)}, 32")
        self.reset_flags(4, 6)
        self.ln()
        self.bar1_arrive(4)
        if opt.get('nobulk'):
            A("s_branch .Lend"); return
        A(f"s_mul_i32 {s(sH)}, {s(sB)}, 9363")
        A(f"s_lshr_b32 {s(sH)}, {s(sH)}, 16")
        A(f"s_mul_i32 s3, {s(sH)}, 7")
        A(f"s_sub_u32 {s(sJ)}, {s(sB)}, s3")
        vT, vq, vXA, vOne = 1, 4, 2, 3
        self.tr_addr(vT, 8)
        self.dma_voffs(vq, (0, 1, 2, 3), 8192, 16, 6, 8)
        A(f"s_lshl_b32 {s(sT)}, {s(sH)}, 8")
        units = []
        for m, sr in ((1, SWK), (2, SWV), (0, SWQ)):
            for u in range(8):
                units.append((sr, vq, (lambda u=u: A(f"s_add_u32 s3, {s(sT)}, {u*64*8192}")), 128 + (m * 8 + u) * 16))
        self.load_units(units, vT)
        self.bar1_wait(8, 9)
        A("s_barrier")
        A(f"s_mov_b32 {s(sSeg)}, {s(sJ)}")
        A(f"s_mov_b32 {s(sBuf)}, 0")
        self.xn_dma(sSeg, sBuf)
        A(f"v_mov_b32 {v(vXA)}, v0")
        A(f"v_mov_b32 {v(vOne)}, 1")
        A(f"s_mov_b32 {s(sFl)}, {HUGE}")
        self.wait(vm=0)
        XB, AQ, AK, AV, PK = 16, 48, 64, 80, 96
        top = A.newlabel('qkv')
        A.label(top)
        self.wait(vm=7)
        A("s_barrier")
        A(f"s_add_u32 {s(sNx)}, {s(sSeg)}, 7")
        A(f"s_xor_b32 {s(sBuf)}, {s(sBuf)}, 0x8000")
        self.xn_dma(sNx, sBuf)
        def flagA():
            self.wait(vm=8)
            A("s_mov_b64 exec, 1")
            A(f"buffer_store_byte {v(vOne)}, off, {srd(SWS)}, {s(sFl)} sc1")
            A("s_mov_b64 exec, -1")
        self.gemm1([(128 + 128, AK, True), (128 + 256, AV, False), (128, AQ, True)], vXA, XB, mid=(6, flagA))
        A(f"s_lshl_b32 s3, {s(sH)}, 6")
        A(f"s_add_u32 s3, s3, {s(sSeg)}")
        A(f"s_lshl_b32 {s(sFl)}, s3, 2")
        A(f"s_add_u32 {s(sFl)}, {s(sFl)}, {s(sW)}")
        A(f"s_add_u32 {s(sFl)}, {s(sFl)}, {FKV}")
        A("s_mul_i32 s3, s3, 24576")
        A(f"s_lshl_b32 s4, {s(sW)}, 10")
        A("s_add_u32 s3, s3, s4")
        A(f"s_add_u32 s3, s3, {QKV}")
        A("s_add_u32 s4, s3, s4")
        k = 0
        for (ab, boff, tr) in ((AK, 0, True), (AV, 8192, False), (AQ, 16384, True)):
            for o in range(2):
                pk = PK + 4 * k; k += 1
                for i in range(2):
                    d = ab + (8 * i + 4 * o if tr else 8 * o + 4 * i)
                    self.cvt(pk + 2 * i, d, d + 1)
                    self.cvt(pk + 2 * i + 1, d + 2, d + 3)
                if tr:
                    A(f"s_add_u32 s5, s3, {boff + o*4096}")
                else:
                    A(f"s_add_u32 s5, s4, {boff + o*1024}")
                A(f"buffer_store_dwordx4 {v(pk,4)}, v0, {srd(SWS)}, s5 offen sc1")
        A(f"v_xor_b32 {v(vXA)}, 0x8000, {v(vXA)}")
        A(f"s_mov_b32 {s(sSeg)}, {s(sNx)}")
        A(f"s_cmp_lt_u32 {s(sSeg)}, 64")
        A(f"s_cbranch_scc1 {top}")
        self.wait(vm=0)
        A("s_mov_b64 exec, 1")
        A(f"buffer_store_byte {v(vOne)}, off, {srd(SWS)}, {s(sFl)} sc1")
        A("s_mov_b64 exec, -1")
        A("s_barrier")
        if opt.get('stopA'):
            A("s_branch .Lend"); return
        A(f"s_lshr_b32 {s(sFb)}, {s(sB)}, 4")
        self.dma_voffs(vq, (0, 1, 2, 3), 3584, 16, 6, 8)
        self.dma_voffs(vq + 8, (0, 1, 2, 3), 1024, 16, 8, 8)
        A(f"s_lshl_b32 {s(sT)}, {s(sFb)}, 8")
        A(f"s_lshl_b32 {s(sNx)}, {s(sFb)}, 17")
        units = []
        for m, sr in ((0, SWG), (1, SWU)):
            for u in range(8):
                units.append((sr, vq, (lambda u=u: A(f"s_add_u32 s3, {s(sT)}, {u*64*3584}")), 128 + (m * 8 + u) * 16))
        for tp in range(4):
            for u in range(2):
                units.append((SWD, vq + 8, (lambda u=u, tp=tp: A(f"s_add_u32 s3, {s(sNx)}, {u*65536+tp*64}")), 384 + (tp * 2 + u) * 16))
        self.load_units(units, vT)
        A("s_barrier")
        A(f"s_and_b32 {s(sSeg)}, {s(sB)}, 15")
        A(f"s_lshl_b32 {s(sSeg)}, {s(sSeg)}, 2")
        A(f"s_mov_b32 {s(sBuf)}, 0")
        self.xn_dma(sSeg, sBuf)
        vAct, vActW = 4, 5
        A(f"v_mov_b32 {v(vXA)}, v0")
        A(f"v_add_u32 {v(vAct)}, {ACT}, v0")
        A(f"s_lshl_b32 s3, {s(sW)}, 10")
        A(f"v_add_u32 {v(vActW)}, s3, {v(vAct)}")
        A(f"s_mov_b32 {s(sFl)}, {HUGE}")
        self.wait(vm=0)
        AG, AU = 48, 64
        top = A.newlabel('ffn')
        A.label(top)
        self.wait(vm=9)
        A("s_barrier")
        A(f"s_add_u32 {s(sNx)}, {s(sSeg)}, 1")
        A(f"s_xor_b32 {s(sBuf)}, {s(sBuf)}, 0x8000")
        self.xn_dma(sNx, sBuf)
        def flagF():
            self.wait(vm=8)
            A("s_mov_b64 exec, 1")
            A(f"buffer_store_dword {v(vOne)}, off, {srd(SWS)}, {s(sFl)} sc1")
            A("s_mov_b64 exec, -1")
        self.gemm1([(128, AG, True), (256, AU, True)], vXA, XB, mid=(8, flagF))
        T = 80
        for i in range(16):
            A(f"v_mul_f32 {v(T+i)}, {hex(f2u(-LOG2E))}, {v(AG+i)}")
        for i in range(16):
            A(f"v_exp_f32 {v(T+i)}, {v(T+i)}")
        for i in range(16):
            A(f"v_add_f32 {v(T+i)}, 1.0, {v(T+i)}")
        for i in range(16):
            A(f"v_rcp_f32 {v(T+i)}, {v(T+i)}")
        for i in range(16):
            A(f"v_mul_f32 {v(AG+i)}, {v(AG+i)}, {v(AU+i)}")
        for i in range(16):
            A(f"v_mul_f32 {v(AG+i)}, {v(AG+i)}, {v(T+i)}")
        for tau in range(2):
            for t in range(2):
                d = AG + 8 * t + 4 * tau
                self.cvt(PK + 4 * tau + 2 * t, d, d + 1)
                self.cvt(PK + 4 * tau + 2 * t + 1, d + 2, d + 3)
            A(f"ds_write_b128 {v(vActW)}, {v(PK+4*tau,4)} offset:{tau*4096}")
        A(f"s_lshl_b32 s3, {s(sSeg)}, 2")
        A(f"s_add_u32 s3, s3, {s(sW)}")
        A(f"s_lshl_b32 {s(sFl)}, s3, 6")
        A(f"s_add_u32 {s(sFl)}, {s(sFl)}, {s(sFb)}")
        A(f"s_lshl_b32 {s(sFl)}, {s(sFl)}, 2")
        A(f"s_add_u32 {s(sFl)}, {s(sFl)}, {FP + 32*4}")
        A(f"s_mul_i32 s3, s3, {8*NP}")
        A(f"s_add_u32 s3, s3, {s(sFb)}")
        A("s_lshl_b32 s3, s3, 10")
        A(f"s_add_u32 {s(sP)}, s3, {PB + 32*1024}")
        self.wait(lgkm=0)
        A("s_barrier")
        self.proj(384, vAct, 16, 48, 96, sP)
        A(f"v_xor_b32 {v(vXA)}, 0x8000, {v(vXA)}")
        A(f"s_mov_b32 {s(sSeg)}, {s(sNx)}")
        A(f"s_and_b32 s3, {s(sSeg)}, 3")
        A("s_cmp_lg_u32 s3, 0")
        A(f"s_cbranch_scc1 {top}")
        self.wait(vm=0)
        A("s_mov_b64 exec, 1")
        A(f"buffer_store_dword {v(vOne)}, off, {srd(SWS)}, {s(sFl)} sc1")
        A("s_mov_b64 exec, -1")
        A("s_barrier")
        if opt.get('stopF'):
            A("s_branch .Lend"); return
        A(f"s_lshl_b32 {s(sNx)}, {s(sH)}, 17")
        units = []
        for tp in range(4):
            for u in range(2):
                units.append((SWO, vq + 8, (lambda u=u, tp=tp: A(f"s_add_u32 s3, {s(sNx)}, {u*65536+tp*64}")), 384 + (tp * 2 + u) * 16))
        self.load_units(units, vT)
        A("s_barrier")
        BIAS, SEL, vRL, vRL2, vOut, vFP = 128, 136, 6, 7, 8, 9
        QFr, KFr, VFr, KM, VM = 140, 156, 188, 204, 220
        SX_, SM_, PX, PM, OA = 228, 236, 240, 244, 112
        sTq, sEh, sBlk, sRed = 72, 73, 74, 75
        A(f"s_and_b32 {s(sTq)}, {s(sW)}, 1")
        A(f"s_lshr_b32 {s(sEh)}, {s(sW)}, 1")
        A("v_bfe_u32 v10, v0, 6, 2")
        A("v_lshlrev_b32 v10, 3, v10")
        A("v_bfe_u32 v11, v0, 4, 2")
        A("v_add_u32 v10, v10, v11")
        A(f"s_lshl_b32 s3, {s(sTq)}, 2")
        A("v_add_u32 v12, s3, v10")
        A("v_lshrrev_b32 v11, 5, v0")
        A("v_and_b32 v11, 0x18, v11")
        A("v_sub_u32 v12, v12, v11")
        A(f"v_mov_b32 v13, {hex(f2u(-1e30))}")
        for jj in range(8):
            A(f"v_cmp_le_i32 vcc, {jj}, v12")
            A(f"v_cndmask_b32 {v(BIAS+jj)}, v13, 0, vcc")
        self.selector(SEL, 12)
        A("v_and_b32 v12, 0x300, v0")
        A("v_and_b32 v13, 0xf0, v0")
        A(f"v_lshl_or_b32 {v(vRL)}, v12, 2, v13")
        A(f"s_lshl_b32 s3, {s(sW)}, 8")
        A(f"v_add_u32 {v(vRL)}, s3, {v(vRL)}")
        A("v_mov_b32 v13, 0x200")
        A("v_cmp_gt_u32 vcc, v13, v0")
        A(f"v_mov_b32 v14, {HUGE}")
        A(f"v_cndmask_b32 {v(vRL2)}, v14, {v(vRL)}, vcc")
        A(f"s_and_b32 s3, {s(sH)}, 1")
        A("s_lshl_b32 s3, s3, 2")
        A("v_add_u32 v10, s3, v10")
        A("v_lshlrev_b32 v10, 10, v10")
        A("v_lshrrev_b32 v12, 5, v12")
        A(f"s_lshr_b32 s3, {s(sH)}, 1")
        A("s_lshl_b32 s3, s3, 6")
        A(f"s_lshl_b32 s4, {s(sW)}, 4")
        A("s_add_u32 s3, s3, s4")
        A("v_add3_u32 v10, v10, v12, s3")
        A(f"v_cndmask_b32 {v(vOut)}, v14, v10, vcc")
        A(f"v_lshrrev_b32 {v(vFP)}, 2, v0")
        for i in (0, 1, 4, 5):
            A(f"v_mov_b32 {v(PM+i)}, 0")
        A(f"s_lshl_b32 s3, {s(sTq)}, 12")
        A(f"s_lshl_b32 s4, {s(sEh)}, 11")
        A("s_add_u32 s3, s3, s4")
        A(f"v_add_u32 {v(vActW)}, s3, {v(vAct)}")
        A(f"s_mov_b32 {s(sSeg)}, {s(sJ)}")
        top = A.newlabel('att')
        A.label(top)
        A(f"s_lshl_b32 {s(sBlk)}, {s(sH)}, 6")
        A(f"s_add_u32 {s(sBlk)}, {s(sBlk)}, {s(sSeg)}")
        A(f"s_mul_i32 s3, {s(sBlk)}, 24576")
        A(f"s_add_u32 s3, s3, {QKV}")
        A(f"s_lshl_b32 s4, {s(sTq)}, 12")
        A("s_add_u32 s4, s4, s3")
        A("s_add_u32 s4, s4, 16384")
        for ks in range(4):
            A(f"buffer_load_dwordx4 {v(QFr+4*ks,4)}, v0, {srd(SWS)}, s4 offen offset:{ks*1024} sc1")
        A("s_add_u32 s4, s3, 4096")
        for tau in range(2):
            for ks in range(4):
                A(f"buffer_load_dwordx4 {v(KFr+16*tau+4*ks,4)}, v0, {srd(SWS)}, {'s3' if tau == 0 else 's4'} offen offset:{ks*1024} sc1")
        A(f"s_lshl_b32 s4, {s(sEh)}, 12")
        A("s_add_u32 s4, s4, s3")
        A("s_add_u32 s4, s4, 8192")
        for i in range(4):
            A(f"buffer_load_dwordx4 {v(VFr+4*i,4)}, v0, {srd(SWS)}, s4 offen offset:{i*1024} sc1")
        self.wait(vm=4)
        for ks in range(4):
            for tau in range(2):
                d = SX_ + 4 * tau
                self.mfma(d, KFr + 16 * tau + 4 * ks, QFr + 4 * ks, BIAS + 4 * tau if ks == 0 else d)
        if not opt.get('noFM'):
            A(f"s_lshl_b32 s6, {s(sBlk)}, 2")
            A(f"s_add_u32 s6, s6, {FM}")
            lp, ex = self.spin_begin()
            A(f"buffer_load_dword v10, off, {srd(SWS)}, s6 sc1")
            self.wait(vm=0)
            A("v_readfirstlane_b32 s4, v10")
            A("s_cmp_eq_u32 s4, 0x01010101")
            A(f"s_cbranch_scc1 {ex}")
            self.spin_end(lp, ex)
        A(f"s_lshl_b32 s3, {s(sBlk)}, 13")
        A(f"s_add_u32 s3, s3, {KVM}")
        for ks in range(4):
            A(f"buffer_load_dwordx4 {v(KM+4*ks,4)}, v0, {srd(SWS)}, s3 offen offset:{ks*1024} sc1")
        A(f"s_lshl_b32 s4, {s(sEh)}, 11")
        A("s_add_u32 s4, s4, s3")
        A("s_add_u32 s4, s4, 4096")
        for i in range(2):
            A(f"buffer_load_dwordx4 {v(VM+4*i,4)}, v0, {srd(SWS)}, s4 offen offset:{i*1024} sc1")
        A(f"v_max3_f32 v10, {v(SX_)}, {v(SX_+1)}, {v(SX_+2)}")
        A(f"v_max3_f32 v11, {v(SX_+3)}, {v(SX_+4)}, {v(SX_+5)}")
        A(f"v_max3_f32 v10, v10, {v(SX_+6)}, {v(SX_+7)}")
        A("v_max_f32 v10, v10, v11")
        self.wait(vm=2)
        for ks in range(4):
            self.mfma(SM_, KM + 4 * ks, QFr + 4 * ks, None if ks == 0 else SM_)
        A(f"v_max3_f32 v10, v10, {v(SM_)}, {v(SM_+1)}")
        A(f"v_max3_f32 v10, v10, {v(SM_+2)}, {v(SM_+3)}")
        def xred(r, t, op):
            for sw in ('16', '32'):
                A(f"v_mov_b32 {v(t)}, {v(r)}")
                A(f"v_permlane{sw}_swap_b32 {v(t)}, {v(r)}")
                A(f"{op} {v(r)}, {v(r)}, {v(t)}")
        xred(10, 11, 'v_max_f32')
        A(f"s_mov_b32 s3, {hex(CSC)}")
        A("v_mul_f32 v10, s3, v10")
        for i in range(12):
            A(f"v_fma_f32 {v(SX_+i)}, {v(SX_+i)}, s3, -v10")
        for i in range(12):
            A(f"v_exp_f32 {v(SX_+i)}, {v(SX_+i)}")
        for i in range(4):
            self.cvt(PX + i, SX_ + 2 * i, SX_ + 2 * i + 1)
        self.cvt(PM + 2, SM_, SM_ + 1)
        self.cvt(PM + 3, SM_ + 2, SM_ + 3)
        self.wait(vm=0)
        for i in range(4):
            self.mfma(OA + 4 * i, VFr + 4 * i, PX, None)
        for i in range(4):
            self.mfma(OA + 4 * i, VM + 4 * (i // 2), PM + 2 if i % 2 == 0 else PM, OA + 4 * i)
        A(f"v_add_f32 v11, {v(SM_)}, {v(SM_+1)}")
        A(f"v_add_f32 v12, {v(SM_+2)}, {v(SM_+3)}")
        A("v_add_f32 v11, v11, v12")
        A(f"v_fma_f32 v11, v11, 0.5, {v(SX_)}")
        for i in range(1, 8):
            A(f"v_add_f32 v11, v11, {v(SX_+i)}")
        xred(11, 12, 'v_add_f32')
        A("v_rcp_f32 v11, v11")
        for i in range(16):
            A(f"v_mul_f32 {v(OA+i)}, {v(OA+i)}, v11")
        for k2 in range(2):
            for i in range(4):
                self.cvt(PK + 4 * k2 + i, OA + 8 * k2 + 2 * i, OA + 8 * k2 + 2 * i + 1)
            A(f"ds_write_b128 {v(vActW)}, {v(PK+4*k2,4)} offset:{k2*1024}")
        A(f"s_lshl_b32 s3, {s(sSeg)}, 2")
        A(f"s_add_u32 s3, s3, {s(sW)}")
        A(f"s_lshl_b32 {s(sFl)}, s3, 6")
        A(f"s_add_u32 {s(sFl)}, {s(sFl)}, {s(sH)}")
        A(f"s_lshl_b32 {s(sFl)}, {s(sFl)}, 2")
        A(f"s_add_u32 {s(sFl)}, {s(sFl)}, {FP}")
        A(f"s_mul_i32 s3, s3, {8*NP}")
        A(f"s_add_u32 s3, s3, {s(sH)}")
        A("s_lshl_b32 s3, s3, 10")
        A(f"s_add_u32 {s(sP)}, s3, {PB}")
        self.wait(lgkm=0)
        A("s_barrier")
        self.proj(384, vAct, 16, 48, 96, sP)
        A(f"s_lshl_b32 {s(sRed)}, {s(sSeg)}, 15")
        A(f"buffer_load_dwordx2 {v(14,2)}, {v(vOut)}, {srd(SX)}, {s(sRed)} offen")
        self.wait(vm=1)
        A("s_mov_b64 exec, 1")
        A(f"buffer_store_dword {v(vOne)}, off, {srd(SWS)}, {s(sFl)} sc1")
        A("s_mov_b64 exec, -1")
        A("s_barrier")
        A(f"s_lshl_b32 s6, {s(sSeg)}, 2")
        A(f"s_lshr_b32 s3, {s(sH)}, 3")
        A("s_add_u32 s6, s6, s3")
        A("s_lshl_b32 s6, s6, 8")
        A(f"s_add_u32 s6, s6, {FP}")
        lp, ex = self.spin_begin()
        A(f"buffer_load_dword v10, {v(vFP)}, {srd(SWS)}, s6 offen sc1")
        self.wait(vm=0)
        A("v_cmp_eq_u32 vcc, 1, v10")
        A(f"s_and_b32 s5, vcc_hi, {(1 << (NP-32)) - 1}")
        A(f"s_xor_b32 s5, s5, {(1 << (NP-32)) - 1}")
        A("s_not_b32 s4, vcc_lo")
        A("s_or_b32 s4, s4, s5")
        A(f"s_cbranch_scc0 {ex}")
        self.spin_end(lp, ex)
        A(f"s_lshl_b32 s3, {s(sSeg)}, 5")
        A(f"s_add_u32 s3, s3, {s(sH)}")
        A(f"s_mul_i32 s3, s3, {NP*1024}")
        A(f"s_add_u32 s3, s3, {PB}")
        RD = 16
        for u in range(12):
            A(f"buffer_load_dwordx4 {v(RD+4*u,4)}, {v(vRL if u < 11 else vRL2)}, {srd(SWS)}, s3 offen sc1")
            if u < 11: A("s_add_u32 s3, s3, 4096")
        RA, RB = 64, 68
        for u in range(12):
            self.wait(vm=11 - u)
            d = RA if u < 8 else RB
            self.mfma(d, SEL, RD + 4 * u, None if u in (0, 8) else d)
        A("s_mov_b32 s6, 0xffff0000")
        A("v_lshlrev_b32 v72, 16, v14"); A("v_and_b32 v73, s6, v14")
        A("v_lshlrev_b32 v74, 16, v15"); A("v_and_b32 v75, s6, v15")
        def rnd4(b, t):
            self.cvt(t, b, b + 1); self.cvt(t + 1, b + 2, b + 3)
            A(f"v_lshlrev_b32 {v(b)}, 16, {v(t)}"); A(f"v_and_b32 {v(b+1)}, s6, {v(t)}")
            A(f"v_lshlrev_b32 {v(b+2)}, 16, {v(t+1)}"); A(f"v_and_b32 {v(b+3)}, s6, {v(t+1)}")
        rnd4(RA, 10)
        for i in range(4): A(f"v_add_f32 {v(72+i)}, {v(72+i)}, {v(RA+i)}")
        rnd4(72, 10)
        rnd4(RB, 12)
        for i in range(4): A(f"v_add_f32 {v(72+i)}, {v(72+i)}, {v(RB+i)}")
        self.cvt(10, 72, 73); self.cvt(11, 74, 75)
        A(f"buffer_store_dwordx2 {v(10,2)}, {v(vOut)}, {srd(SOUT)}, {s(sRed)} offen")
        A(f"s_add_u32 {s(sSeg)}, {s(sSeg)}, 7")
        A(f"s_cmp_lt_u32 {s(sSeg)}, 64")
        A(f"s_cbranch_scc1 {top}")
        A("s_branch .Lend")

    def rec(self):
        A = self.A
        A.label('.Lrec')
        self.reset_flags(4, 6)
        if self.opt.get('norec'):
            self.bar1_arrive(4)
            A("s_branch .Lend"); return
        from rec import emit_rec
        emit_rec(self)

    def build(self):
        A = self.A
        self.prologue()
        self.bulk()
        self.rec()
        A.label('.Lend')
        A("s_endpgm")
        body = A.finalize(timed=not self.opt.get('untimed'))
        ref = open(os.path.join(os.path.dirname(os.path.abspath(__file__)), '..', 'cdna_kernels', NAME + '.s.ref')).read()
        head = []
        for l in ref.split('\n'):
            if l.startswith('; @launch'):
                head.append(f'; @launch grid=(256,1,1) block=(256,1,1) lds={LDS_BYTES}')
            elif l.startswith(';') or l.startswith('.'):
                head.append(l)
            else:
                break
        tail = f"""
.section .rodata,"a"
.p2align 6
.amdhsa_kernel {NAME}_kernel
  .amdhsa_next_free_vgpr 512
  .amdhsa_next_free_sgpr 102
  .amdhsa_accum_offset 256
  .amdhsa_group_segment_fixed_size 0
  .amdhsa_kernarg_size 112
  .amdhsa_user_sgpr_count 2
  .amdhsa_user_sgpr_kernarg_segment_ptr 1
  .amdhsa_system_sgpr_workgroup_id_x 1
.end_amdhsa_kernel
"""
        return '\n'.join(head) + f'\n{NAME}_kernel:\n' + body + tail

if __name__ == '__main__':
    opt = {}
    out = None
    for a_ in sys.argv[1:]:
        if a_.startswith('-o'): out = a_[2:]
        elif '=' in a_:
            k, x = a_.split('='); opt[k] = int(x, 0)
        else: opt[a_] = 1
    sys.modules['gen'] = sys.modules['__main__']
    txt = Gen(opt).build()
    if out is None:
        out = os.path.join(os.path.dirname(os.path.abspath(__file__)), '..', 'cdna_kernels', NAME + '.s')
    open(out, 'w').write(txt)
    print('wrote', out, len(txt), 'bytes')
```

```python
import re

def v(a, n=1): return f"v{a}" if n == 1 else f"v[{a}:{a+n-1}]"
def a(x, n=1): return f"a{x}" if n == 1 else f"a[{x}:{x+n-1}]"
def s(x, n=1): return f"s{x}" if n == 1 else f"s[{x}:{x+n-1}]"
def R(x, n=1):
    if x >= 256:
        return a(x-256, n)
    assert x+n <= 256
    return v(x, n)

_REG = re.compile(r'^(-|\|)?(?:abs\()?([vas])(?:(\d+)|\[(\d+):(\d+)\])\)?\|?$')
def parse_reg(tok):
    tok = tok.strip()
    if tok in ('vcc',): return [('s', 106), ('s', 107)]
    if tok == 'vcc_lo': return [('s', 106)]
    if tok == 'vcc_hi': return [('s', 107)]
    if tok == 'exec': return [('s', 126), ('s', 127)]
    if tok == 'exec_lo': return [('s', 126)]
    if tok == 'exec_hi': return [('s', 127)]
    if tok == 'm0': return [('s', 124)]
    m = _REG.match(tok)
    if not m: return []
    f = m.group(2)
    if m.group(3) is not None: lo = hi = int(m.group(3))
    else: lo, hi = int(m.group(4)), int(m.group(5))
    if f == 'a': return [('v', 256+i) for i in range(lo, hi+1)]
    return [(f, i) for i in range(lo, hi+1)]

def split_ops(sx):
    out, cur, d = [], '', 0
    for ch in sx:
        if ch in '[(': d += 1
        if ch in '])': d -= 1
        if ch == ',' and d == 0:
            out.append(cur.strip()); cur = ''
        else: cur += ch
    if cur.strip(): out.append(cur.strip())
    return out

TRANS = ('v_exp_f32', 'v_log_f32', 'v_rcp_f32', 'v_rsq_f32', 'v_sqrt_f32', 'v_sin_f32', 'v_cos_f32', 'v_rcp_iflag_f32')

class Ins:
    def __init__(self, text):
        self.text = text
        t = text.split(';')[0].strip()
        self.label = None
        self.mn = None
        if t.endswith(':'):
            self.label = t[:-1]; return
        if not t or t.startswith('.'): return
        sp = t.split(None, 1)
        self.mn = mn = sp[0]
        rest = sp[1] if len(sp) > 1 else ''
        ops = split_ops(rest)
        mods = ''
        if ops:
            parts = ops[-1].split(None, 1)
            ops[-1] = parts[0]
            mods = parts[1] if len(parts) > 1 else ''
        self.ops, self.mods = ops, mods
        regs = [parse_reg(o) for o in ops]
        self.rd, self.wr = set(), set()
        self.cls = None
        self.srcC = set(); self.srcAB = set(); self.D = ()
        self.passes = 0
        self.widestore = set()
        def allr(xs):
            r = set()
            for x in xs: r.update(x)
            return r
        if mn.startswith('v_mfma') or mn.startswith('v_smfmac'):
            self.cls = 'mfma'
            self.passes = 8 if '32x32' in mn else 4
            self.wr = set(regs[0]); self.D = tuple(regs[0])
            if mn.startswith('v_smfmac'):
                self.srcC = set(regs[0]); self.srcAB = allr(regs[1:4])
                self.Ctuple = tuple(regs[0])
            else:
                self.srcC = set(regs[3]); self.srcAB = allr(regs[1:3])
                self.Ctuple = tuple(regs[3])
            self.rd = self.srcC | self.srcAB
        elif mn.startswith('v_'):
            self.cls = 'valu'
            base = re.sub(r'_(e32|e64|dpp|sdwa)$', '', mn)
            self.base = base
            self.trans = base in TRANS
            self.dpp = mn.endswith('_dpp') or 'row_' in mods or 'quad_perm' in mods
            self.perml = base.startswith('v_permlane')
            self.rdlane = base in ('v_readlane_b32', 'v_readfirstlane_b32')
            if base == 'v_nop':
                pass
            elif self.perml:
                self.rd = allr(regs); self.wr = allr(regs)
            elif base in ('v_add_co_u32', 'v_sub_co_u32', 'v_subrev_co_u32', 'v_addc_co_u32', 'v_subb_co_u32', 'v_div_scale_f32', 'v_mad_u64_u32'):
                self.wr = allr(regs[:2]); self.rd = allr(regs[2:])
            else:
                self.wr = set(regs[0]); self.rd = allr(regs[1:])
                if base in ('v_fmac_f32', 'v_pk_fmac_f16', 'v_dot2c_f32_bf16', 'v_writelane_b32') or self.dpp:
                    self.rd |= set(regs[0])
                if base.startswith('v_cmpx'): raise Exception('avoid v_cmpx')
                if base == 'v_cndmask_b32' and len(ops) == 3: self.rd |= {('s', 106), ('s', 107)}
        elif mn.startswith('buffer_') or mn.startswith('global_'):
            self.cls = 'vmem'
            lds = (' lds' in ' ' + mods) or ('_lds_' in mn)
            self.ldsdma = lds
            if 'load' in mn and not lds:
                self.wr = set(regs[0]); self.rd = allr(regs[1:])
            elif 'atomic' in mn:
                self.rd = allr(regs)
                if 'sc0' in mods: self.wr = set(regs[0])
            else:
                self.rd = allr(regs)
                if 'store' in mn and ('x4' in mn or 'x3' in mn):
                    self.widestore = set(regs[0] if mn.startswith('buffer_') else regs[1])
            if lds: self.rd.add(('s', 124))
        elif mn.startswith('ds_'):
            self.cls = 'ds'
            if 'read' in mn or 'permute' in mn or 'swizzle' in mn:
                self.wr = set(regs[0]); self.rd = allr(regs[1:])
            else:
                self.rd = allr(regs)
        elif mn.startswith('s_'):
            self.cls = 'salu'
            if mn.startswith('s_cmp') or mn.startswith('s_cbranch') or mn in ('s_branch', 's_waitcnt', 's_barrier', 's_nop', 's_endpgm', 's_sleep', 's_setprio', 's_bitcmp1_b64', 's_bitcmp0_b64', 's_bitcmp1_b32', 's_bitcmp0_b32'):
                self.rd = allr(regs)
            else:
                if regs: self.wr = set(regs[0]); self.rd = allr(regs[1:])
                if 'saveexec' in mn: self.wr |= {('s', 126), ('s', 127)}
        else:
            raise Exception('unknown instr ' + text)
    def states(self):
        if self.mn == 's_nop': return int(self.ops[0], 0) + 1
        return 1

def need(p, c):
    n = 0
    if p.cls == 'valu':
        vw = {r for r in p.wr if r[0] == 'v'}
        sw = {r for r in p.wr if r[0] == 's'}
        if c.cls == 'mfma' and vw & c.rd: n = max(n, 2)
        if c.cls == 'valu':
            if vw & c.rd:
                if c.dpp or c.perml: n = max(n, 2)
                if c.rdlane: n = max(n, 1)
                if p.trans and not c.trans: n = max(n, 1)
                if p.trans and c.trans: n = max(n, 1)
            if sw & c.rd:
                n = max(n, 4 if c.base in ('v_readlane_b32', 'v_writelane_b32', 'v_div_fmas_f32') else 2)
        if c.cls in ('vmem', 'ds') :
            if sw & c.rd: n = max(n, 5)
            if p.trans and vw & c.rd: n = max(n, 1)
        if c.cls == 'salu' and sw & c.rd and p.rdlane: n = max(n, 1)
    if p.cls == 'mfma':
        D = p.wr
        big = {4: 8, 8: 12}[p.passes]
        if c.cls == 'mfma':
            if D & c.srcAB: n = max(n, big)
            if D & c.srcC:
                if c.Ctuple == p.D and c.passes == p.passes: pass
                else: n = max(n, {4: 6, 8: 10}[p.passes])
            elif D & c.wr: n = max(n, big)
        elif c.cls in ('valu', 'vmem', 'ds'):
            if D & (c.rd | c.wr): n = max(n, big)
        if c.cls == 'valu' and p.srcC & c.wr: n = max(n, {4: 3, 8: 7}[p.passes])
    if p.cls == 'salu' and ('s', 124) in p.wr:
        if c.cls == 'vmem' and c.ldsdma: n = max(n, 1)
    if p.cls == 'vmem' and p.widestore and c.cls in ('valu', 'mfma') and p.widestore & c.wr: n = max(n, 2)
    return n

WIN = 14
class Asm:
    def __init__(self):
        self.lines = []
        self.uid = 0
    def __call__(self, text):
        for l in text.split('\n'):
            l = l.strip()
            if l: self.lines.append(l)
    def label(self, name): self.lines.append(name + ':')
    def newlabel(self, p='L'):
        self.uid += 1
        return f".{p}{self.uid}"
    def finalize(self, timed=True):
        ins = [Ins(l) for l in self.lines]
        entry = {}
        pads = {}
        def adv(i, t, vf, mf):
            if i.cls == 'mfma': t = max(t, vf, mf)
            elif i.cls == 'valu': t = max(t, vf)
            return t
        def after(i, t, vf, mf):
            if i.cls == 'mfma':
                mf = t + 4 * i.passes
                vf = t + (12 if i.mn.startswith('v_smfmac') and i.passes == 4 else 8)
            elif i.cls == 'valu' and (i.trans or i.perml): vf = t + 8
            return t + 4 * i.states(), vf, mf
        for it in range(8):
            changed = False
            win = []
            pads = {}
            for idx, i in enumerate(ins):
                if i.label:
                    win = win + entry.get(i.label, [])
                    continue
                if i.mn is None: continue
                n = 0
                for (p, d, t, vf, mf) in win:
                    q = need(p, i)
                    if q > d:
                        if timed and p.cls == 'mfma':
                            if adv(i, t, vf, mf) < 4 * (q + 1): n = max(n, (4 * (q + 1) - t + 3) // 4)
                        else: n = max(n, q - d)
                if n: pads[idx] = n
                w2 = []
                for (p, d, t, vf, mf) in win:
                    t2, vf2, mf2 = after(i, adv(i, t + 4 * n, vf, mf), vf, mf)
                    d2 = d + n + i.states()
                    if d2 < WIN and not (timed and p.cls == 'mfma' and t2 > 4 * WIN): w2.append((p, d2, t2, vf2, mf2))
                win = w2
                win.append((i, 0) + after(i, 0, 0, 0))
                if i.mn.startswith('s_cbranch') or i.mn == 's_branch':
                    tgt = i.ops[0]
                    cur = entry.setdefault(tgt, [])
                    for e in win:
                        if not any(e[0] is c[0] and all(c[k] <= e[k] for k in range(1, 5)) for c in cur):
                            cur.append(e); changed = True
                if i.mn in ('s_branch', 's_endpgm'): win = []
            if not changed: break
        out = []
        for idx, i in enumerate(ins):
            if idx in pads:
                n = pads[idx]
                while n > 0:
                    k = min(n, 16); out.append(f"    s_nop {k-1}"); n -= k
            out.append(i.text if i.label or i.mn is None else '    ' + i.text)
        return '\n'.join(out) + '\n'

def estimate(lines):
    t = 0; vf = 0; mf = 0; df = 0; pf = 0; port = 0
    out = []
    for l in lines:
        i = Ins(l.strip())
        if i.mn is None: out.append((t, l)); continue
        dur = 4 * i.states()
        if i.cls == 'mfma':
            t = max(t, vf, mf); sm = i.mn.startswith('v_smfmac')
            mf = t + 4 * i.passes; vf = t + (12 if sm else 8); df = max(df, t + 8); pf = t + 28; port = vf
        elif i.cls == 'valu':
            t = max(t, vf)
            if i.mn.startswith('v_pk_'): t = max(t, pf)
            long = i.trans or i.perml
            vf = t + (8 if long else 4); df = max(df, t + (16 if long else 12))
        elif i.cls == 'ds':
            t = max(t, df)
            if 'write' in i.mn:
                nd = len(i.rd) - 1
                if i.ops[1] == i.ops[-1] and len(i.ops) == 3: nd *= 2
                vf = max(t + 4, port) + 4 * nd; df = vf
        elif i.cls == 'vmem':
            dur = 12
            if 'store' in i.mn:
                nd = len(parse_reg(i.ops[0]))
                vf = max(t + 4, port) + 4 * nd
        out.append((t, l))
        t += dur
    return out
```

```python
from asmlib import *
import gen as G
from gen import *

MX, OX, QT, KT, SELL, ZL, KVB, WLB = 0, 0, 8192, 10240, 14336, 15360, 16384, 49152
NSL = 7

def emit_rec(g):
    A = g.A
    opt = g.opt
    sH, sS, sMemRd, sMemWr, sMemRst, sPartWr, sPartRd, sKV, sPub, sPar = range(62, 72)
    sRdy, sHi, sC, sT, sT2, sDb, sFKV, sMW0, sKVv, sKXo = 72, 76, 78, 80, 81, 82, 83, 84, 85, 61
    sRing, sSpin, sKVL, sMR0, sK01, sS1, sVXo = 62, 60, 7, 6, 5, 81, 63
    sX = {1: 74, 2: 75, 3: 79}
    s8K, sBlk = 2, 3
    vIdx, vKw, vTq, vPS, vPL, vMS, vWL, vMX, vOw, vFl, vPub = range(1, 12)
    CON = 12
    T0, T1, T2, T3 = 20, 21, 22, 23
    PR, aQ, aK, aV = 24, 32, 40, 72
    wait, mfma, smf, cvt = g.wait, g.mfma, g.smf, g.cvt

    A(f"s_mov_b32 {s(sH)}, {s(sSlot)}")
    A(f"s_mul_i32 {s(sLB)}, {s(sW)}, {NSL*4096}")
    A(f"s_add_u32 {s(sLB)}, {s(sLB)}, {WLB}")
    def bf(d, off, w): A(f"v_bfe_u32 {v(d)}, v0, {off}, {w}")
    bf(16, 4, 1); bf(17, 6, 1)
    A(f"v_and_b32 {v(vPL)}, 0x3a0, v0")
    A(f"v_lshl_or_b32 {v(vPL)}, v16, 6, {v(vPL)}")
    A(f"v_lshl_or_b32 {v(vPL)}, v17, 4, {v(vPL)}")
    bf(17, 6, 2); bf(18, 8, 2); bf(19, 5, 1)
    A("v_lshlrev_b32 v20, 4, v16")
    A("v_lshl_or_b32 v20, v19, 6, v20")
    A("v_lshl_or_b32 v20, v18, 2, v20")
    A(f"v_mov_b32 v21, {HUGE}")
    A("v_cmp_eq_u32 vcc, 0, v17")
    A(f"v_cndmask_b32 {v(vMS)}, v21, v20, vcc")
    for i in range(4): A(f"v_mov_b32 {v(24+i)}, -1")
    A(f"s_and_b32 s3, {s(sH)}, 6")
    A(f"s_and_b32 s4, {s(sW)}, 1")
    A("s_or_b32 s3, s3, s4")
    A("s_lshl_b32 s3, s3, 10")
    A(f"s_lshr_b32 s4, {s(sH)}, 3")
    A("s_lshl_b32 s4, s4, 8")
    A("s_add_u32 s3, s3, s4")
    A(f"s_lshr_b32 s4, {s(sW)}, 1")
    A("s_lshl_b32 s4, s4, 7")
    A("s_add_u32 s3, s3, s4")
    A(f"s_and_b32 s4, {s(sH)}, 1")
    A("s_lshl_b32 s4, s4, 5")
    A("s_add_u32 s3, s3, s4")
    A(f"s_add_u32 {s(sMW0)}, s3, {MEMR}")
    A(f"s_add_u32 {s(sPub)}, s3, {MEMG}")
    for i in range(4):
        A(f"s_add_u32 s3, {s(sMW0)}, {i*8192}")
        A(f"buffer_store_dword v24, {v(vMS)}, {srd(SWS)}, s3 offen sc1")
    A(f"s_lshl_b32 s3, {s(sH)}, 13")
    A(f"s_lshl_b32 s4, {s(sW)}, 11")
    A("s_add_u32 s3, s3, s4")
    A(f"s_add_u32 {s(sPartRd)}, s3, {PART}")
    for u in range(2):
        A(f"buffer_store_dwordx4 {v(24,4)}, v0, {srd(SWS)}, {s(sPartRd)} offen offset:{u*1024} sc1")
    sk = A.newlabel('xm')
    A(f"s_cmp_lg_u32 {s(sW)}, 0")
    A(f"s_cbranch_scc1 {sk}")
    A("s_mov_b64 exec, 1")
    A(f"s_lshl_b32 s3, 1, {s(sXcc)}")
    A("v_mov_b32 v21, s3")
    A(f"buffer_atomic_or v21, off, {srd(SDBG)}, 0 offset:8 sc1")
    A("s_mov_b64 exec, -1")
    A.label(sk)
    vT, vq, vq2, vTo, tmp, STA = 28, 32, 36, 29, 30, 48
    g.tr_addr(vT, tmp)
    bf(tmp, 7, 1)
    A(f"v_lshlrev_b32 {v(tmp)}, 9, {v(tmp)}")
    A(f"v_xor_b32 {v(vTo)}, {v(tmp)}, {v(vT)}")
    g.dma_voffs(vq, (2, 3, 0, 1), 8192, 128, 6, tmp)
    g.dma_voffs(vq2, (0, ('c', 6), 1, 2), 1024, 8, 8, tmp)
    A(f"v_add_u32 {v(vWL)}, {s(sLB)}, v0")
    A(f"s_lshl_b32 {s(sT)}, {s(sH)}, 8")
    A(f"s_lshl_b32 s3, {s(sW)}, 17")
    A(f"s_add_u32 {s(sT)}, {s(sT)}, s3")
    A(f"s_lshl_b32 {s(sT2)}, {s(sH)}, 17")
    def qkv_so(ls): return lambda: A(f"s_xor_b32 s3, {s(sT)}, {((ls // 2) + 4 * (ls % 2)) << 17}")
    def wo_so(u, k):
        def f():
            A(f"s_xor_b32 s3, {s(sW)}, {k}")
            A("s_lshl_b32 s3, s3, 15")
            A(f"s_add_u32 s3, s3, {s(sT2)}")
            if u: A(f"s_add_u32 s3, s3, {u*128}")
        return f
    units = []
    W = {}
    SLOT = {}
    nxt = [112]
    own = (vTo, 8)
    SR = {'q': SWQ, 'k': SWK, 'v': SWV}
    def reg_unit(key, sr, vqq, so, *x):
        W[key] = nxt[0]; units.append((sr, vqq, so, nxt[0]) + x); nxt[0] += 16
    def lds_unit(key, reg, sr, vqq, so):
        W[key] = reg; SLOT[key] = len(units) % NSL; units.append((sr, vqq, so, ('lds',)))
    for ls in range(2, 8): reg_unit(('q', ls), SWQ, vq, qkv_so(ls))
    for ls in range(2, 8): reg_unit(('k', ls), SWK, vq, qkv_so(ls))
    for ls in range(0, 8): reg_unit(('v', ls), SWV, vq, qkv_so(ls))
    reg_unit(('o', 0, 0), SWO, vq2, wo_so(0, 0), own)
    reg_unit(('o', 1, 0), SWO, vq2, wo_so(1, 0), own)
    for k in range(1, 4): reg_unit(('o', 0, k), SWO, vq2, wo_so(0, k))
    assert nxt[0] == 512
    for key, reg in ((('q', 0), 48), (('q', 1), 64), (('k', 0), 80), (('k', 1), 96)):
        lds_unit(key, reg, SR[key[0]], vq, qkv_so(key[1]))
    for k, reg in ((1, 40), (2, 96), (3, 24)): lds_unit(('o', 1, k), reg, SWO, vq2, wo_so(1, k))
    def stage_list(key, t):
        return [f"ds_read_b128 {v(W[key]+8*t+4*i,4)}, {v(vWL)} offset:{SLOT[key]*4096+t*2048+i*1024}" for i in range(2)]
    STG = []
    for key, t in ((('q', 0), 0), (('k', 0), 0), (('k', 0), 1), (('k', 1), 0), (('k', 1), 1), (('q', 1), 1), (('q', 0), 1), (('q', 1), 0)):
        STG += stage_list(key, t)

    def after_issue():
        g.bar1_arrive(21, vm=4 * NSL)
        A("v_mov_b32 v20, 0x4444")
        A("v_mov_b32 v21, 0xeeee")
        A("v_cmp_eq_u32 vcc, 0, v19")
        A(f"v_cndmask_b32 {v(vIdx)}, v21, v20, vcc")
        A("v_and_b32 v22, 0x80, v0")
        A("v_cmp_eq_u32 vcc, 0, v22")
        A("v_cndmask_b32 v20, v21, v20, vcc")
        A(f"v_lshl_or_b32 {v(vIdx)}, v20, 16, {v(vIdx)}")
        A(f"s_not_b64 {s(sHi,2)}, vcc")
        bf(20, 4, 4); bf(21, 9, 1)
        A("v_mul_u32_u24 v21, 0x140, v21")
        A("v_lshlrev_b32 v20, 3, v20")
        A("v_xor_b32 v20, v20, v21")
        bf(21, 8, 1)
        A("v_lshl_or_b32 v20, v21, 2, v20")
        A(f"s_lshl_b32 s3, {s(sW)}, 9")
        A(f"s_add_u32 s3, s3, {QT}")
        A(f"v_add_u32 {v(vKw)}, s3, v20")
        bf(20, 6, 4)
        A("v_lshlrev_b32 v20, 3, v20")
        A("v_mul_u32_u24 v21, 0x140, v16")
        A(f"v_xor_b32 {v(vTq)}, v20, v21")
        A("v_mul_u32_u24 v21, 0x140, v19")
        A("v_xor_b32 v20, v20, v21")
        A("v_lshl_or_b32 v20, v16, 7, v20")
        A(f"v_lshl_or_b32 {v(vTq)}, v20, 16, {v(vTq)}")
        for i in range(4): A(f"v_mov_b32 {v(CON+i)}, 0")
        A(f"ds_write_b128 v0, {v(CON,4)} offset:{ZL}")
        bf(20, 9, 1)
        A(f"v_lshlrev_b32 {v(vPS)}, 15, v20")
        A(f"v_lshl_or_b32 {v(vPS)}, v17, 13, {v(vPS)}")
        bf(20, 8, 1)
        A(f"v_lshl_or_b32 {v(vPS)}, v20, 12, {v(vPS)}")
        A("v_and_b32 v20, 0x30, v0")
        A(f"v_or_b32 {v(vPS)}, {v(vPS)}, v20")
        A(f"v_lshrrev_b32 {v(vOw)}, 4, v22")
        A("v_and_b32 v20, 0x70, v0")
        A(f"v_or_b32 {v(vOw)}, {v(vOw)}, v20")
        A(f"v_lshl_or_b32 {v(vOw)}, v18, 7, {v(vOw)}")
        A(f"s_lshl_b32 s3, {s(sW)}, 9")
        if OX: A(f"s_add_u32 s3, s3, {OX}")
        A(f"v_add_u32 {v(vOw)}, s3, {v(vOw)}")
        A(f"s_lshl_b32 s3, {s(sW)}, 11")
        A(f"v_add_u32 {v(vMX)}, s3, v0")
        A(f"s_add_u32 {s(sMemRd)}, s3, {MEMR}")
        g.selector(24, 20)
        A(f"ds_write_b128 v0, {v(24,4)} offset:{SELL}")
        A(f"s_mov_b32 {s(sC)}, {hex(CSC)}")
        for i in range(4): A(f"v_mov_b32 {v(CON+i)}, {'0x3f003f00' if i < 2 else '0x3f803f80'}")
        for k in range(1, 4): A(f"s_mov_b32 {s(sX[k])}, {512*k}")
        A(f"s_lshl_b32 s3, {s(sW)}, 16")
        A(f"s_lshl_b32 s4, {s(sH)}, 6")
        A("s_add_u32 s3, s3, s4")
        A(f"s_add_u32 {s(sPartWr)}, s3, {PART}")
        A(f"s_mul_i32 s3, {s(sH)}, {64*24576}")
        A(f"s_lshl_b32 s4, {s(sW)}, 11")
        A("s_add_u32 s3, s3, s4")
        A(f"s_add_u32 {s(sKV)}, s3, {QKV}")
        A(f"s_lshl_b32 s3, {s(sH)}, 8")
        A(f"s_add_u32 {s(sFKV)}, s3, {FKV}")
        A(f"s_mov_b32 {s(sPar)}, 0")
        A(f"s_mov_b64 {s(sRdy,2)}, 0")
        A(f"s_lshl_b32 s3, {s(sH)}, 2")
        A(f"s_add_u32 s3, s3, {s(sW)}")
        A("s_lshl_b32 s3, s3, 12")
        A(f"s_add_u32 {s(sDb)}, s3, {DBGW}")
        wait(lgkm=0)
    g.load_units(units, vT, stage=(STA, vWL), after_issue=after_issue, NS=NSL)
    g.ts(3, 16)
    g.bar1_wait(16, 17)
    g.ts(4, 17)
    A("v_readlane_b32 s3, v16, 2")
    A(f"s_bcnt1_i32_b32 {s(sT)}, s3")
    bf(16, 6, 2); bf(17, 4, 1)
    A("v_lshl_or_b32 v16, v16, 1, v17")
    A("v_lshlrev_b32 v16, 10, v16")
    A("v_and_b32 v17, 0x300, v0")
    A("v_or_b32 v16, v16, v17")
    bf(17, 5, 1)
    A("v_lshl_or_b32 v16, v17, 4, v16")
    A(f"s_lshl_b32 s3, {s(sW)}, 5")
    for ls in range(2):
        A(f"buffer_load_dwordx4 {v(aQ+4*ls,4)}, v16, {srd(SM0)}, s3 offen offset:{ls*128}")
    for u in range(2):
        A(f"buffer_load_dwordx4 {v(aK,4)}, v0, {srd(SWS)}, {s(sPartRd)} offen offset:{u*1024} sc1")
    A(f"s_and_b32 s3, {s(sH)}, 3")
    A("s_lshl_b32 s3, s3, 13")
    A(f"s_add_u32 s3, s3, {s(sMemRd)}")
    for u in range(2):
        A(f"buffer_load_dwordx4 {v(aK,4)}, v0, {srd(SWS)}, s3 offen offset:{u*1024} sc1")
    A("s_mov_b32 s4, 0x05040100")
    A("s_mov_b32 s5, 0x07060302")
    wait(vm=4)
    for ls in range(2):
        i0 = aQ + 4 * ls; o = PR + 4 * ls
        A(f"v_perm_b32 {v(o)}, {v(i0+2)}, {v(i0)}, s4")
        A(f"v_perm_b32 {v(o+1)}, {v(i0+2)}, {v(i0)}, s5")
        A(f"v_perm_b32 {v(o+2)}, {v(i0+3)}, {v(i0+1)}, s4")
        A(f"v_perm_b32 {v(o+3)}, {v(i0+3)}, {v(i0+1)}, s5")
    A(f"s_lshl_b32 s3, {s(sW)}, 11")
    A(f"s_add_u32 s4, s3, {MEMG}")
    A(f"s_cmp_eq_u32 {s(sH)}, 0")
    A(f"s_cselect_b32 s4, s4, {HUGE}")
    for u in range(2):
        A(f"buffer_store_dwordx4 {v(PR+4*u,4)}, v0, {srd(SWS)}, s4 offen offset:{u*1024} sc1")
    A(f"s_mov_b32 {s(sRing)}, 0")
    A(f"s_mov_b32 {s(sMemWr)}, {s(sMW0)}")
    A(f"s_mov_b32 {s(sMR0)}, {s(sMemRd)}")
    A(f"s_mov_b32 {s(sSpin)}, {SPIN}")
    A(f"s_mov_b32 {s(sCnt)}, {SPIN}")
    A(f"s_lshl_b32 s3, {s(sW)}, 12")
    A(f"s_add_u32 {s(sKVL)}, s3, {KVB}")
    A(f"s_mov_b32 {s(sKXo)}, {KVB + 16384}")
    A(f"s_mov_b32 {s(sK01)}, 0x01010101")
    A(f"s_mov_b32 {s(s8K)}, 8192")
    A(f"s_mov_b32 {s(sBlk)}, 24576")

    def kv_wait(back):
        A(f"v_lshrrev_b32 {v(T3)}, 2, v0")
        A(f"s_mov_b32 s4, {s(sSpin)}")
        lp = A.newlabel('kvw')
        A.label(lp)
        A(f"buffer_load_dword {v(vFl)}, {v(T3)}, {srd(SWS)}, {s(sFKV)} offen sc1")
        wait(vm=0)
        A(f"v_cmp_eq_u32 {s(sRdy,2)}, {s(sK01)}, {v(vFl)}")
        A("s_nop 1")
        A(f"s_bitcmp1_b64 {s(sRdy,2)}, {s(sS1)}")
        A(f"s_cbranch_scc1 {back}")
        A("s_sub_u32 s4, s4, 1")
        A(f"s_cbranch_scc0 {lp}")
        A(f"s_mov_b32 {s(sSpin)}, 0")
        A(f"s_branch {back}")
    def z64(r, c=0): return f"v_mov_b64 {v(r,2)}, {c}"
    ZQ = [z64(aQ + 2 * i) for i in range(4)]
    ZACC = [z64(aK + 2 * i) for i in range(4)]
    ADDR = [f"v_xor_b32 {v(T0+k)}, {2048*(k+1)}, {v(vMX)}" for k in range(3)]
    nokv = opt.get('nokv')
    def dma_txt(j): return f"buffer_load_dwordx4 v0, {srd(SWS)}, {s(sKV if j < 2 else sKVv)} offen offset:{j*1024} sc1 lds"
    NXT = [f"s_add_u32 {s(sKV)}, {s(sKV)}, {s(sBlk)}", f"s_mov_b32 {s(sVXo)}, {s(sKVL)}", f"s_xor_b32 {s(sKVL)}, {s(sKVL)}, {KVB ^ (KVB + 16384)}",
           f"s_xor_b32 {s(sKXo)}, {s(sKXo)}, {KVB ^ (KVB + 16384)}", f"s_mov_b32 m0, {s(sKVL)}", f"s_add_u32 {s(sKVv)}, {s(sKV)}, {8192 - 2048}"]

    g.ts(5, 16)
    A(f"s_mov_b32 {s(sS1)}, 0")
    if not nokv: kv_wait('.Lkv0')
    A.label('.Lkv0')
    if nokv:
        wait(vm=0)
        for x in ZQ: A(x)
        for i in range(32): A(f"ds_write_b128 v0, {v(aQ+4,4)} offset:{KVB+i*1024}")
    else:
        for x in NXT[4:]: A(x)
        for j in range(4): A(dma_txt(j))
    A(f"s_mov_b32 {s(sS1)}, 1")
    if not nokv: kv_wait('.Lkv1')
    A.label('.Lkv1')
    if opt.get('stamps'):
        for q in range(4): A(f"buffer_load_dwordx4 {v(16,4)}, v0, {srd(SWS)}, {s(sDb)} offen offset:{q*1024} sc1")
        wait(vm=0)
    for x in STG + ZQ + ZACC + ADDR + NXT: A(x)
    wait(vm=0, lgkm=0)
    if opt.get('tl'): A("s_memtime s[96:97]")
    A(f"s_mov_b32 {s(sMemRst)}, {HUGE}")
    A(f"s_cmp_eq_u32 {s(sT)}, 1")
    A(f"s_mov_b32 {s(sT)}, {HUGE}")
    if opt.get('slow'): A("s_branch .LokS")
    A("s_cbranch_scc0 .LokS")
    A("s_branch .LokF")
    sPubC = sT

    def loop(tag, st):
        out = []
        def ds(text, tg=None):
            A(text); out.append(tg)
        def dsw(tg):
            if tg not in out: return
            i = len(out) - 1 - out[::-1].index(tg)
            n = len(out) - 1 - i
            wait(lgkm=min(n, 15))
            del out[:len(out) - min(n, 15)]
        def emit(f):
            if f is None: return
            if isinstance(f, (list, tuple)):
                for x in f: emit(x)
            elif callable(f): f()
            elif f.startswith('ds_'): ds(f)
            else: A(f)
        def pop(q, n):
            for _ in range(n):
                if q: emit(q.pop(0))
        def rdf(dst, addr, off, tg): return lambda: ds(f"ds_read_b128 {v(dst,4)}, {v(addr)} offset:{off}", tg)
        def trf(dst, ad, off, tg): return lambda: ds(f"ds_read_b64_tr_b16 {v(dst,2)}, {v(ad)} offset:{off}", tg)
        def tagd(text, tg): return lambda: ds(text, tg)
        def W_(tg): return lambda: dsw(tg)
        def BAR(tg): return lambda: (dsw(tg), A("s_barrier"))
        def cv(d, x): return f"v_cvt_pk_bf16_f32 {v(d)}, {v(x)}, {v(x+1)}"
        def ror8(d, x): return f"v_mov_b32_dpp {v(d)}, {v(x)} row_ror:8 row_mask:0xf bank_mask:0xf"
        def memP():
            for u in range(2):
                A(f"buffer_load_dwordx4 {v(PR+4*u,4)}, v0, {srd(SWS)}, {s(sMemRd)} offen offset:{u*1024} sc1")
        P = {0: PR, 1: PR + 4}
        for ls in range(2, 8): P[ls] = 48 + 4 * (ls - 2)
        ACC = {'q': aQ, 'k': aK, 'v': aV}
        def X(m, ls, t): return lambda: smf(ACC[m] + 4 * t, P[ls], W[(m, ls)] + 8 * t, vIdx)
        def post(ac):
            o = []
            for t in range(2):
                for i in range(2): o.append(f"v_add_f32 {v(ac+4*t+i)}, {v(ac+4*t+i)}, {v(ac+4*t+2+i)}")
                o.append(cv(ac + t, ac + 4 * t))
            return o
        KX, QF, KF = 80, 24, 40
        S0, S1, VX, M_, VMr, BM, XP = 16, 80, 84, 96, aV, 74, 76
        OX0, OX1, OM, SUM = 32, 36, 48, 52
        AC = {0: 56, 1: 64}
        OA = [16, 80, 84, 88]
        RA, SEL = 32, 40
        np1 = opt.get('np1', 2); np2 = opt.get('np2', 2)
        NS1 = opt.get('ns1', 10)
        def gap(n):
            for _ in range(n // 4): A("s_nop 15")
            if n % 4: A(f"s_nop {4 * (n % 4) - 1}")
        def masked(f):
            if not opt.get('nomask'): A("s_mov_b64 exec, vcc")
            f()
            if not opt.get('nomask'): A("s_mov_b64 exec, -1")
        def G(f, *fill):
            f(); emit(fill)
        def run(mf, fills):
            for i, f in enumerate(mf):
                emit(fills.pop(('p', i), None))
                f()
                emit(fills.pop(i, None))
            assert not fills, fills
        def spread(fills, items, start, per=1):
            items = list(items); i = start
            while items:
                fills.setdefault(i, []).extend(items[:per]); items = items[per:]; i += 1
            return i
        def kvchk():
            if nokv: return
            A(f"s_bitcmp1_b64 {s(sRdy,2)}, {s(sS1)}")
            A(f"s_cbranch_scc0 .Lkvw{tag}")
            A.label(f".Lkvok{tag}")
        S2 = [f"v_cmp_eq_u32 {s(sRdy,2)}, {s(sK01)}, {v(vFl)}"] + STG[NS1:] + [kvchk, f"s_mov_b32 {s(sCnt)}, {s(sSpin)}"]
        S2 += ADDR + [f"s_xor_b32 {s(sPar)}, {s(sPar)}, 1", "s_mov_b64 vcc, -1"]
        if np1 > 1:
            assert opt.get('h2a', 40) >= 40
            S2 += [lambda: wait(vm=1)]
        S2 += ZACC
        A.label(f".Ltop{tag}")
        pop(S2, opt.get('h2a', 40))
        gap(opt.get('dl2', 0))
        if 'w2a' in opt: wait(vm=opt['w2a'])
        if opt.get('ht'): A("s_memtime s[94:95]")
        for i in range(np2 - 1):
            memP()
            pop(S2, opt.get('h2b', 40) if i < np2 - 2 else len(S2))
            gap(opt.get('g2', 0))
            if 'w2b' in opt: wait(vm=opt['w2b'])
        pop(S2, len(S2))
        if opt.get('stamps') and not opt.get('ht') and 'probe' not in opt:
            g.stamp_flush(16, 17, sDb)
            A(f"s_add_u32 {s(sDb)}, {s(sDb)}, 64")
        A.label(f".Lp2{tag}")
        masked(memP)
        A(f"s_sub_u32 {s(sCnt)}, {s(sCnt)}, 1")
        A(f"s_cbranch_scc1 .Lgive{tag}")
        for x in ZQ: A(x)
        wait(vm=2 * np2 - 2, lgkm=0)
        del out[:]
        A.label(f".Lok{tag}")
        g.stamp(0)
        A(f"v_max3_u32 v16, {v(PR)}, {v(PR+1)}, {v(PR+2)}")
        A(f"v_max3_u32 v17, {v(PR+5)}, {v(PR+6)}, {v(PR+7)}")
        A(f"v_max3_u32 v16, v16, {v(PR+3)}, {v(PR+4)}")
        X('q', 0, 0)()
        ds(f"ds_write_b128 {v(vMX)}, {v(PR,4)}", 'w')
        X('q', 0, 1)()
        ds(f"ds_write_b128 {v(vMX)}, {v(PR+4,4)} offset:1024", 'w')
        A("v_max_u32 v16, v16, v17")
        A("v_cmp_eq_u32 vcc, -1, v16")
        X('q', 1, 1)()
        A(f"s_cbranch_vccnz .Lp2{tag}")
        A.label(f".Lcont{tag}")
        if opt.get('ht'): A("s_memtime s[96:97]")
        if opt.get('cnt'): A(f"s_mov_b32 s92, {s(sCnt)}")
        DM = [None if nokv else dma_txt(j) for j in range(4)]
        ard = {ls: rdf(P[ls], T0 + ls // 2 - 1, (ls % 2) * 1024, ('a', ls)) for ls in range(2, 8)}
        def zr(r, tg=None): return rdf(r, 0, ZL, tg)
        aKX, aTq, aKw2, aTk, aVX, aFl, cM1 = 17, 18, 19, 20, 21, 23, 16
        A(z64(aV))
        mo = [X('q', 1, 0), X('k', 0, 0), X('k', 1, 0), X('k', 0, 1), X('k', 1, 1), X('v', 0, 0), X('v', 1, 0), X('v', 0, 1), X('v', 1, 1)]
        if opt.get('b1', 3) == 3:
            F = {0: DM[0], 1: DM[1], 2: z64(aV + 2), 3: [BAR('w'), lambda: g.stamp(1), ard[2]], 4: [ard[3], z64(aV + 4)],
                 5: [f"s_mov_b64 vcc, {s(sHi,2)}", ard[4], z64(aV + 6)], 6: [ard[5], ard[6]], 7: [ard[7], f"v_lshrrev_b32 {v(aFl)}, 2, v0"],
                 8: [W_(('a', 2)), f"v_add_u32 {v(aKX)}, {s(sKXo)}, v0"]}
        else:
            F = {0: DM[0], 1: DM[1], 2: [BAR('w'), lambda: g.stamp(1), ard[2]], 3: [ard[3], z64(aV + 2)], 4: [ard[4], z64(aV + 4)],
                 5: [f"s_mov_b64 vcc, {s(sHi,2)}", ard[5], z64(aV + 6)], 6: [ard[6]], 7: [ard[7], f"v_lshrrev_b32 {v(aFl)}, 2, v0"],
                 8: [W_(('a', 2)), f"v_add_u32 {v(aKX)}, {s(sKXo)}, v0"]}
        run(mo, F)
        kx = [rdf(KX + 4 * j, aKX, (j // 2) * 4096 + (j % 2) * 1024, ('kx', j)) for j in range(8)]
        def postq(t):
            a_ = aQ + 4 * t
            return [f"v_add_f32 {v(a_+i)}, {v(a_+i)}, {v(a_+2+i)}" for i in range(2)] + [f"v_mul_f32 {v(a_+i)}, {s(sC)}, {v(a_+i)}" for i in range(2)] + [cv(aQ + t, a_)]
        pq = postq(0) + postq(1); pk = post(aK); pv = post(aV)
        upd = [f"s_mov_b32 {s(sMemRst)}, {s(sMemWr)}", f"s_add_u32 {s(sRing)}, {s(sRing)}, {s(s8K)}", f"s_and_b32 {s(sRing)}, {s(sRing)}, 0x6000",
               f"s_add_u32 {s(sMemWr)}, {s(sMW0)}, {s(sRing)}", f"s_add_u32 {s(sMemRd)}, {s(sMR0)}, {s(sRing)}",
               f"s_add_u32 {s(sPub)}, {s(sPub)}, {s(s8K)}", f"s_mov_b32 {s(sPubC)}, {s(sPub)}", f"s_mov_b32 {s(sCnt)}, {s(sSpin)}",
               f"s_add_u32 {s(sS1)}, {s(sS1)}, 1"] + NXT
        F = {0: DM[2],
             1: [W_(('a', 3)), kx[0], f"v_and_b32 {v(aTq)}, 0xffff, {v(vTq)}"],
             2: [kx[1], f"v_xor_b32 {v(aKw2)}, 0x84, {v(vKw)}"],
             3: [W_(('a', 7)), kx[2], f"v_lshrrev_b32 {v(aTk)}, 16, {v(vTq)}"],
             4: DM[3],
             5: [kx[3], f"v_add_u32 {v(aVX)}, {s(sVXo)}, v0"],
             6: f"buffer_store_dword {v(vPub)}, {v(vMS)}, {srd(SWS)}, {s(sPubC)} offen sc1",
             7: [kx[4], f"v_mov_b32 {v(cM1)}, -1"],
             8: f"buffer_load_dword {v(vFl)}, {v(aFl)}, {srd(SWS)}, {s(sFKV)} offen sc1",
             9: f"buffer_store_dword {v(cM1)}, {v(vMS)}, {srd(SWS)}, {s(sMemRst)} offen{st}",
             10: [kx[5], pq[0]], 11: [kx[6], pq[1]]}
        qseq = [(ls, t) for ls in range(2, 5) for t in range(2)] + [(ls, t) for t in range(2) for ls in range(5, 8)]
        run([X('q', *x) for x in qseq], F)
        g.stamp(2)
        F = {}
        for i in range(8): F[i] = upd[2 * i:2 * i + 2] + [pq[2 + i]]
        assert len(upd) <= 16
        F[8] = tagd(f"ds_write2_b32 {v(vKw)}, {v(aQ)}, {v(aQ+1)} offset0:0 offset1:32", 'w')
        F[7].insert(1, kx[7])
        F[9] = [lambda: wait(vm=3 if nokv else 7), pk[0]]; F[10] = pk[1]; F[11] = pk[2]
        run([X('k', ls, t) for t in range(2) for ls in range(2, 8)], F)
        g.stamp(3)
        qf = [trf(QF + 2 * j, aTq, QT + (j // 2) * 512 + (j % 2) * 128, ('qf', j // 2)) for j in range(8)]
        kf = [trf(KF + 2 * j, aTk, KT + (j // 2) * 512 + (j % 2) * 2048, ('kf', j // 2)) for j in range(8)]
        kw = [tagd(f"ds_write2st64_b32 {v(a_)}, {v(aK)}, {v(aK+1)} offset0:{(KT-QT)//256} offset1:{(KT-QT)//256+8}", 'w') for a_ in (vKw, aKw2)]
        F = {0: [BAR('w'), qf[0]], 1: [qf[1], pk[3]], 2: [qf[2], pk[4]], 3: [qf[3], pk[5]], 4: kw[0], 5: kw[1], 6: qf[4:6], 7: qf[6:8],
             8: [zr(56), zr(60)]}
        B3 = opt.get('b3', 10)
        F[B3] = [BAR(('qf', 3)), kf[0]]
        nk = 1
        for i in range(B3 + 1, 12): F[i] = kf[nk:nk + 2]; nk += 2
        run([X('v', ls, t) for ls in range(2, 8) for t in range(2)], F)
        g.stamp(4)
        if opt.get('ht'):
            g.stamp_flush(16, 17, sDb)
            del out[:]
            A(f"s_add_u32 {s(sDb)}, {s(sDb)}, 64")
        def SX(tau, ks):
            d = (S0, S1)[tau]
            return lambda: mfma(d, KX + 16 * tau + 4 * ks, QF + 4 * ks, None if ks == 0 else d)
        def SMm(ks): return lambda: mfma(M_, KF + 4 * ks, QF + 4 * ks, None if ks == 0 else M_)
        x0 = lambda i: v(S0 + i)
        x1 = lambda i: v(S1 + i)
        vx = [rdf(VX, aVX, 2048, 'vx'), tagd(f"ds_read_b64 {v(VX+4,2)}, {v(aVX)} offset:{3072+8}", 'vx'), tagd(f"ds_read_b64 {v(VX+6,2)}, {v(aVX)} offset:3072", 'vx')]
        dl = kf[nk:]
        while len(dl) < 4: dl.append(None)
        dl += vx + [zr(64), zr(68)]
        vl = pv + [f"v_max3_f32 {v(T3)}, {x0(0)}, {x0(1)}, {x0(2)}", z64(BM)]
        F = {i: [dl[i] if i < len(dl) else None, vl[i]] for i in range(8)}
        F[7].insert(0, W_(('kf', 1)))
        F[8] = dl[8:]
        assert len(dl) <= 10
        cnd = [f"v_cndmask_b32 {x0(j)}, {x0(j)}, {x1(j)}, vcc" for j in range(4)]
        F[9] = [W_(('kf', 3)), f"v_max3_f32 {v(T3)}, {v(T3)}, {x0(3)}, {x1(0)}", f"v_max3_f32 {v(T3)}, {v(T3)}, {x1(1)}, {x1(2)}"]
        F[10] = [f"v_max_f32 {v(T2)}, {v(T3)}, {x1(3)}", f"v_max_f32 {v(T3)}, {v(T3)}, {x1(3)}"]
        F[11] = [W_('vx'), f"v_permlane16_swap_b32 {v(T2)}, {v(T3)}", f"v_max_f32 {v(T3)}, {v(T3)}, {v(T2)}", cnd[0], cnd[1]]
        run([SX(i // 4, i % 4) for i in range(8)] + [SMm(i) for i in range(4)], F)
        m = lambda i: v(M_ + i)
        A(f"v_max3_f32 {v(T0)}, {m(0)}, {m(1)}, {m(2)}")
        A(f"v_max3_f32 {v(T1)}, {v(T0)}, {m(3)}, {v(T3)}")
        A(f"v_max3_f32 {v(T0)}, {v(T0)}, {m(3)}, {v(T3)}")
        A(cnd[2]); A(cnd[3])
        A(f"v_permlane32_swap_b32 {v(T1)}, {v(T0)}")
        A(f"v_max_f32 {v(T0)}, {v(T0)}, {v(T1)}")
        def pks(r): return f"v_pk_add_f32 {v(r,2)}, {v(r,2)}, {v(T0,2)} op_sel_hi:[1,0] neg_lo:[0,1] neg_hi:[0,1]"
        def ex(r): return f"v_exp_f32 {v(r)}, {v(r)}"
        def msk(d, x, bm): return f"v_mov_b32_dpp {v(d)}, {v(x)} quad_perm:[0,1,2,3] row_mask:0xf bank_mask:{bm}"
        A(pks(M_))
        A(ex(M_)); A(ex(M_ + 1))
        A(pks(S0)); A(pks(S0 + 2))
        A(cv(M_, M_))
        A(ex(S0)); A(ex(S0 + 1))
        A(msk(BM, M_, '0x3')); A(msk(BM + 1, M_, '0xc'))
        A(cv(XP, S0))
        A(ex(S0 + 2)); A(ex(S0 + 3))
        A(ror8(XP + 2, XP))
        A(cv(XP + 1, S0 + 2))
        def oad(k): return f"v_bitop3_b32 {v(T0+k)}, {v(vOw)}, -9, {s(sX[k])} bitop3:0x6a"
        G(lambda: A(f"v_mfma_f32_16x16x16_bf16 {v(OM,4)}, {v(VMr,2)}, {v(BM,2)}, 0"), "s_nop 0", ror8(XP + 3, XP + 1), oad(1))
        G(lambda: mfma(SUM, CON, BM, None), oad(2), oad(3))
        stz = lambda z: [x for k in range(1, 4) for x in stage_list(('o', 1, k), z)]
        z0 = [tagd(x, 'z0') for x in stz(0)]; z1 = [tagd(x, ('z1', i // 2)) for i, x in enumerate(stz(1))]
        G(lambda: mfma(OX0, VX, XP, OM), z0[0], z0[1])
        G(lambda: mfma(OX1, VX + 4, XP, OM))
        RL, RH = SUM, SUM + 2
        A(f"v_add_f32_dpp {v(T0)}, {v(SUM)}, {v(SUM)} row_ror:8 row_mask:0xf bank_mask:0xf")
        A(f"v_rcp_f32 {v(T0)}, {v(T0)}")
        A(f"v_cndmask_b32 {v(RH)}, 0, {v(T0)}, vcc")
        A(f"v_sub_f32 {v(RL)}, {v(T0)}, {v(RH)}")
        for i in range(2): A(f"v_pk_mul_f32 {v(OX0+2*i,2)}, {v(OX0+2*i,2)}, {v(RL,2)} op_sel_hi:[1,0]")
        for i in range(2): A(f"v_pk_fma_f32 {v(OX0+2*i,2)}, {v(OX1+2*i,2)}, {v(RH,2)}, {v(OX0+2*i,2)} op_sel_hi:[1,0,1]")
        A(cv(OA[0], OX0)); A(cv(OA[0] + 1, OX0 + 2))
        ds(f"ds_write_b64 {v(vOw)}, {v(OA[0],2)}", 'w')
        A(ror8(OA[0] + 2, OA[0])); A(ror8(OA[0] + 3, OA[0] + 1))
        g.stamp(5)
        def O(u, k, z): return lambda: A(f"v_smfmac_f32_16x16x64_bf16 {v(AC[u]+4*z,4)}, {v(OA[k],4)}, {R(W[('o', u, k)]+8*z,8)}, {v(vIdx)} abid:1")
        mo = [O(0, 0, 0), O(0, 0, 1), O(1, 0, 0), O(1, 0, 1)] + [O(u, k, z) for u in range(2) for z in range(2) for k in range(1, 4)]
        def tagp(r): return f"v_bfi_b32 {v(r)}, 1, {s(sPar)}, {v(r)}"
        B4 = opt.get('b4', 1)
        F = {0: [z0[2], z0[3]], 1: [], 2: [], 3: []}
        F[B4] += [BAR('w')] + [rdf(OA[k], T0 + k, 0, ('o', k)) for k in range(1, 4)]
        F[B4 + 1] += [z0[4], z0[5]]
        F[3] += [W_(('o', 1))]
        F[4] = [W_(('o', 2)), z1[0]]; F[5] = [W_(('o', 3)), z1[1]]; F[6] = z1[2]; F[7] = z1[3]
        F[8] = [z1[4], cv(AC[0], AC[0])]; F[9] = [W_('z0'), z1[5], cv(AC[0] + 1, AC[0] + 2)]
        F[10] = tagp(AC[0]); F[11] = [rdf(SEL, 0, SELL, 'sel'), cv(AC[0] + 2, AC[0] + 4)]; F[12] = [W_(('z1', 2)), cv(AC[0] + 3, AC[0] + 6)]
        F[13] = f"buffer_store_dwordx4 {v(AC[0],4)}, {v(vPS)}, {srd(SWS)}, {s(sPartWr)} offen{st}"
        F[14] = cv(AC[1], AC[1]); F[15] = [cv(AC[1] + 1, AC[1] + 2), tagp(AC[1])]
        run(mo, F)
        A(cv(AC[1] + 2, AC[1] + 4)); A(cv(AC[1] + 3, AC[1] + 6))
        A(f"buffer_store_dwordx4 {v(AC[1],4)}, {v(vPS)}, {srd(SWS)}, {s(sPartWr)} offen offset:2048{st}")
        g.stamp(6)
        if 'probe' in opt:
            g.stamp_flush(16, 17, sDb)
            A(f"s_add_u32 {s(sDb)}, {s(sDb)}, 64")
        S1_ = STG[:NS1] + ["s_mov_b64 vcc, -1"]
        pop(S1_, opt.get('h1a', 30))
        gap(opt.get('dl1', 0))
        if opt.get('ht'): A("s_memtime s[90:91]")
        PB_ = [(PR, PR + 4), (36, 44)]
        def partP(k):
            for u in range(2):
                A(f"buffer_load_dwordx4 {v(PB_[k][u],4)}, {v(vPL)}, {srd(SWS)}, {s(sPartRd)} offen offset:{u*1024} sc1")
        def red(k):
            mfma(RA, PB_[k][0], SEL, None)
            A(f"v_bitop3_b32 v16, {v(PB_[k][0])}, {v(PB_[k][1])}, {s(sPar)} bitop3:0x7e")
            A("v_and_b32 v16, 1, v16")
            mfma(RA, PB_[k][1], SEL, RA)
            A("v_cmp_ne_u32 vcc, 0, v16")
        if np1 == 1:
            pop(S1_, len(S1_))
            dsw('sel')
            if 'w1a' in opt: wait(vm=opt['w1a'])
            A.label(f".Lp1{tag}")
            masked(lambda: partP(0))
            A(f"s_sub_u32 {s(sCnt)}, {s(sCnt)}, 1")
            A(f"s_cbranch_scc1 .Lrgive{tag}")
            wait(vm=0)
            red(0)
            A(f"s_cbranch_vccnz .Lp1{tag}")
        else:
            if 'w1a' in opt: wait(vm=opt['w1a'])
            partP(0)
            pop(S1_, len(S1_))
            gap(opt.get('g1', 0))
            dsw('sel')
            if 'w1l' in opt: wait(lgkm=0)
            if 'w1b' in opt: wait(vm=opt['w1b'])
            A.label(f".Lp1{tag}")
            partP(1)
            wait(vm=2)
            red(0)
            A(f"s_cbranch_vccz .Lrcont{tag}")
            partP(0)
            A(f"s_sub_u32 {s(sCnt)}, {s(sCnt)}, 1")
            A(f"s_cbranch_scc1 .Lrgive{tag}")
            wait(vm=2)
            red(1)
            A(f"s_cbranch_vccnz .Lp1{tag}")
        A.label(f".Lrcont{tag}")
        if opt.get('ht'): A("s_memtime s[92:93]")
        A(f"s_cmp_lg_u32 {s(sS1)}, 64")
        A(f"v_add_f32 v16, {v(RA)}, {v(RA+1)}")
        A(f"v_add_f32 v17, {v(RA+2)}, {v(RA+3)}")
        A("v_permlane32_swap_b32 v16, v17")
        A("v_add_f32 v16, v16, v17")
        A("v_mov_b32_dpp v17, v16 row_ror:4 row_mask:0xf bank_mask:0xf")
        cvt(vPub, 16, 17)
        A(f"buffer_store_dword {v(vPub)}, {v(vMS)}, {srd(SWS)}, {s(sMemWr)} offen{st}")
        g.stamp(7)
        if opt.get('cnt'): A(f"s_mov_b32 s90, {s(sCnt)}")
        A(f"s_cbranch_scc1 .Ltop{tag}")
        A("s_branch .Lrecend")
        A.label(f".Lgive{tag}")
        A(f"s_mov_b32 {s(sSpin)}, 0")
        wait(vm=0, lgkm=0)
        A(f"s_branch .Lcont{tag}")
        A.label(f".Lrgive{tag}")
        A(f"s_mov_b32 {s(sSpin)}, 0")
        wait(vm=0)
        A(f"s_branch .Lrcont{tag}")
        if not nokv:
            A.label(f".Lkvw{tag}")
            kv_wait(f".Lkvok{tag}")

    loop('F', '')
    loop('S', ' sc1')
    A.label('.Lrecend')
    A(f"buffer_store_dword {v(vPub)}, {v(vMS)}, {srd(SWS)}, {s(sPubC)} offen sc1")
    if opt.get('tl'):
        A("s_memtime s[94:95]")
        g.ts(6, 16)
        A("s_sub_u32 s94, s94, s96")
        A("v_mov_b32 v16, s94")
        A(f"buffer_store_dword v16, off, {srd(SWS)}, s101 offset:28")
    A("s_branch .Lend")
```

```python
import sys, os
sys.path.insert(0, os.path.dirname(os.path.abspath(__file__)))
from asmlib import *

NAME = 'parallel_sum__memory_aug_recurrent_mem_tr__swiglu_ffn__prompt'

XN   = 0x0
QKV  = 0x200000
MEMG = 0x3200000
PB   = 0x4300000
NP   = 46
FLG  = 0xA000000
FKV  = FLG
FP   = FLG + 0x10000
MEMR = 0xA100000
PART = 0xA200000
DBGW = 0xA400000
WSZ  = 0xA800000
HUGE = 0x3ff00000

SX, SM0, SWQ, SWK, SWV, SWO, SWG, SWU, SWD, SOUT, SDBG, SWS = [8 + 4 * i for i in range(12)]
def srd(b): return s(b, 4)
sW, sSlot, sDead, sCnt, sXcc, sLB = 56, 57, 58, 59, 60, 61
LDS_BYTES = 163840
SPIN = 40000

LOG2E = 1.4426950408889634
import struct
def f2u(x): return struct.unpack('<I', struct.pack('<f', x))[0]
CSC = f2u((128 ** -0.5) * LOG2E)

class Gen:
    def __init__(self, opt):
        self.A = Asm()
        self.opt = opt

    def mfma(self, D, Aop, Bop, C):
        c = '0' if C is None else R(C, 4)
        self.A(f"v_mfma_f32_16x16x32_bf16 {R(D,4)}, {R(Aop,4)}, {R(Bop,4)}, {c}")
    def smf(self, D, Aop, Bop, idx):
        self.A(f"v_smfmac_f32_16x16x64_bf16 {R(D,4)}, {R(Aop,4)}, {R(Bop,8)}, {v(idx)}")
    def cvt(self, d, x, y):
        self.A(f"v_cvt_pk_bf16_f32 {v(d)}, {v(x)}, {v(y)}")
    def wait(self, vm=None, lgkm=None):
        p = []
        if vm is not None: p.append(f"vmcnt({vm})")
        if lgkm is not None: p.append(f"lgkmcnt({lgkm})")
        self.A("s_waitcnt " + " ".join(p))
    def spin_begin(self):
        A = self.A
        lp, ex = A.newlabel('spin'), A.newlabel('spinx')
        A(f"s_mov_b32 {s(sCnt)}, {SPIN}")
        A(f"s_cmp_lg_u32 {s(sDead)}, 0")
        A(f"s_cselect_b32 {s(sCnt)}, 1, {s(sCnt)}")
        A.label(lp)
        return lp, ex
    def spin_end(self, lp, ex):
        A = self.A
        A(f"s_sub_u32 {s(sCnt)}, {s(sCnt)}, 1")
        A(f"s_cmp_lg_u32 {s(sCnt)}, 0")
        A(f"s_cbranch_scc1 {lp}")
        A(f"s_mov_b32 {s(sDead)}, 1")
        A.label(ex)
    def stamp(self, idx, vt=None, ssoff=None):
        if not self.opt.get('stamps'): return
        sel = self.opt.get('sel', 0)
        if idx >= 100:
            if idx // 100 != sel: return
            idx %= 100
        if not (self.opt.get('smask', 255) >> idx) & 1: return
        self.A(f"s_memtime {s(86+2*idx,2)}")
    def stamp_flush(self, vt, vt2, ssoff):
        if not self.opt.get('stamps'): return
        A = self.A
        A("s_waitcnt lgkmcnt(0)")
        for i in range(8):
            A(f"v_writelane_b32 {v(vt)}, {s(86+2*i)}, {i}")
        A(f"v_lshrrev_b32 {v(vt2)}, 2, v0")
        A("s_mov_b64 exec, 0xff")
        A(f"buffer_store_dword {v(vt)}, {v(vt2)}, {srd(SWS)}, {s(ssoff)} offen")
        A("s_mov_b64 exec, -1")

    def ts(self, idx, vt, sidx=None):
        if not self.opt.get('tl'): return
        A = self.A
        A("s_memrealtime s[100:101]")
        A("s_waitcnt lgkmcnt(0)")
        A(f"v_mov_b32 {v(vt)}, s100")
        A(f"s_lshl_b32 s101, {s(sSlot)}, 2")
        A(f"s_add_u32 s101, s101, {s(sW)}")
        A("s_lshl_b32 s101, s101, 6")
        if sidx is not None: A(f"s_add_u32 s101, s101, {s(sidx)}")
        A("s_lshl_b32 s101, s101, 2")
        A(f"s_add_u32 s101, s101, {DBGW + 0x100000}")
        A(f"buffer_store_dword {v(vt)}, off, {srd(SWS)}, s101 offset:{idx*4}")

    def prologue(self):
        A = self.A
        offs = [0, 8, 16, 24, 32, 40, 64, 72, 80, 88, 96, 104]
        sizes = [2097152, 8192, 4194304, 4194304, 4194304, 4194304, 1835008, 1835008, 1835008, 2097152, 256, WSZ]
        if self.opt.get('tl'): A("s_memrealtime s[98:99]")
        for i, o in enumerate(offs):
            A(f"s_load_dwordx2 {s(8+4*i,2)}, s[0:1], {o}")
        A("v_lshrrev_b32 v1, 6, v0")
        A("v_and_b32 v2, 63, v0")
        A(f"s_getreg_b32 {s(sXcc)}, hwreg(HW_REG_XCC_ID)")
        A(f"v_readfirstlane_b32 {s(sW)}, v1")
        A(f"s_and_b32 {s(sXcc)}, {s(sXcc)}, 7")
        for i, z in enumerate(sizes):
            A(f"s_mov_b32 {s(10+4*i)}, {z}")
            A(f"s_mov_b32 {s(11+4*i)}, 0x20000")
        A(f"s_mov_b32 {s(sDead)}, 0")
        A(f"s_lshl_b32 {s(sLB)}, {s(sW)}, 15")
        A("v_lshlrev_b32 v0, 4, v2")
        A("v_mov_b32 v3, 0x3ff0")
        self.wait(lgkm=0)
        skip = A.newlabel('tk')
        A(f"s_cmp_lg_u32 {s(sW)}, 0")
        A(f"s_cbranch_scc1 {skip}")
        A("s_mov_b64 exec, 1")
        A(f"s_mov_b32 s3, {s(sXcc)}")
        A("s_mov_b32 s4, 8")
        lp, got = A.newlabel('tkl'), A.newlabel('tkg')
        A.label(lp)
        A("v_mov_b32 v4, 1")
        A("s_lshl_b32 s5, s3, 5")
        A(f"buffer_atomic_add v4, off, {srd(SDBG)}, s5 sc0 sc1")
        self.wait(vm=0)
        A("v_readfirstlane_b32 s6, v4")
        A("s_add_u32 s7, s5, s6")
        A("s_cmp_lt_u32 s6, 32")
        A(f"s_cbranch_scc1 {got}")
        A("s_add_u32 s3, s3, 1")
        A("s_and_b32 s3, s3, 7")
        A("s_sub_u32 s4, s4, 1")
        A("s_cmp_lg_u32 s4, 0")
        A(f"s_cbranch_scc1 {lp}")
        A("s_mov_b32 s7, -1")
        A.label(got)
        A("v_mov_b32 v4, s7")
        A("ds_write_b32 v3, v4")
        A("s_mov_b64 exec, -1")
        self.wait(lgkm=0)
        A.label(skip)
        A("s_barrier")
        A("ds_read_b32 v4, v3")
        self.wait(lgkm=0)
        A(f"v_readfirstlane_b32 {s(sSlot)}, v4")
        A(f"s_cmp_eq_u32 {s(sSlot)}, -1")
        A("s_cbranch_scc1 .Lend")
        if self.opt.get('tl'):
            self.ts(1, 4)
            A("v_mov_b32 v4, s98")
            A(f"buffer_store_dword v4, off, {srd(SWS)}, s101 offset:0")
        A(f"s_cmp_lt_u32 {s(sSlot)}, 32")
        A("s_cbranch_scc1 .Lrec")

    def reset_flags(self, vz, vt):
        A = self.A
        sk = A.newlabel('rf')
        A(f"s_cmp_lg_u32 {s(sW)}, 0")
        A(f"s_cbranch_scc1 {sk}")
        A(f"v_mov_b32 {v(vz)}, 0")
        A(f"v_mov_b32 {v(vz+1)}, 0")
        A(f"v_lshrrev_b32 {v(vt)}, 1, v0")
        A(f"s_lshl_b32 s3, {s(sSlot)}, 9")
        A(f"s_add_u32 s3, s3, {FLG}")
        A(f"buffer_store_dwordx2 {v(vz,2)}, {v(vt)}, {srd(SWS)}, s3 offen sc1")
        for i in range(4): A(f"v_mov_b32 {v(vz+4+i)}, -1")
        A(f"s_lshl_b32 s3, {s(sSlot)}, 11")
        A(f"s_add_u32 s3, s3, {MEMG}")
        for u in range(2):
            A(f"buffer_store_dwordx4 {v(vz+4,4)}, v0, {srd(SWS)}, s3 offen offset:{u*1024} sc1")
        A.label(sk)

    def bar1_arrive(self, vt, vm=0):
        A = self.A
        self.wait(vm=vm)
        A("s_barrier")
        sk = A.newlabel('ba')
        A(f"s_cmp_lg_u32 {s(sW)}, 0")
        A(f"s_cbranch_scc1 {sk}")
        A("s_mov_b64 exec, 1")
        A(f"v_mov_b32 {v(vt)}, 1")
        A(f"s_and_b32 s3, {s(sSlot)}, 0xe0")
        A(f"buffer_atomic_add {v(vt)}, off, {srd(SDBG)}, s3 offset:4 sc1")
        A("s_mov_b64 exec, -1")
        A.label(sk)

    def bar1_wait(self, vt, va):
        A = self.A
        A(f"v_lshrrev_b32 {v(va)}, 2, v0")
        A("s_mov_b32 s6, 0x02020202")
        A("s_mov_b32 s7, 0x02020202")
        lp, ex = self.spin_begin()
        A(f"buffer_load_dword {v(vt)}, {v(va)}, {srd(SDBG)}, 0 offen sc1")
        self.wait(vm=0)
        A(f"v_cmp_eq_u32 vcc, 32, {v(vt)}")
        A("s_and_b64 s[4:5], vcc, s[6:7]")
        A("s_cmp_eq_u64 s[4:5], s[6:7]")
        A(f"s_cbranch_scc1 {ex}")
        self.spin_end(lp, ex)

    def tr_addr(self, vt, tmp):
        A = self.A
        A(f"v_and_b32 {v(vt)}, 0xf0, v0")
        A(f"v_and_b32 {v(tmp)}, 0x300, v0")
        A(f"v_lshlrev_b32 {v(tmp)}, 1, {v(tmp)}")
        A(f"v_add3_u32 {v(vt)}, {v(vt)}, {v(tmp)}, {s(sLB)}")

    def dma_voffs(self, vq, rowmap, stride, qrows, swave_shift, tmp):
        A = self.A
        first = True
        for sb in range(4):
            db = rowmap[sb]
            if isinstance(db, tuple): continue
            A(f"v_bfe_u32 {v(tmp)}, v0, {6+sb}, 1")
            if first:
                A(f"v_lshlrev_b32 {v(vq)}, {db}, {v(tmp)}"); first = False
            else:
                A(f"v_lshl_or_b32 {v(vq)}, {v(tmp)}, {db}, {v(vq)}")
        A(f"s_mov_b32 s3, {stride}")
        A(f"v_mul_lo_u32 {v(vq)}, {v(vq)}, s3")
        for sb in range(4):
            db = rowmap[sb]
            if isinstance(db, tuple):
                A(f"v_bfe_u32 {v(tmp)}, v0, {6+sb}, 1")
                A(f"v_lshl_add_u32 {v(vq)}, {v(tmp)}, {db[1]}, {v(vq)}")
        A(f"v_and_b32 {v(tmp)}, 0x30, v0")
        A(f"s_lshl_b32 s3, {s(sW)}, {swave_shift}")
        A(f"v_add3_u32 {v(vq)}, {v(vq)}, {v(tmp)}, s3")
        for q in range(1, 4):
            A(f"v_add_u32 {v(vq+q)}, {q*(qrows*stride-1024)}, {v(vq)}")

    def load_units(self, units, vt, stage=None, after_issue=None, NS=8):
        A = self.A
        n = len(units)
        def issue(k):
            sr, vq, so, dst = units[k][:4]
            slot = k % NS
            A(f"s_add_u32 m0, {s(sLB)}, {slot*4096}")
            so()
            for q in range(4):
                A(f"buffer_load_dwordx4 {v(vq+q)}, {srd(sr)}, s3 offen offset:{q*1024} lds")
        for k in range(min(NS, n)): issue(k)
        if after_issue: after_issue()
        for k in range(n):
            sr, vq, so, dst = units[k][:4]
            va, tstep = units[k][4] if len(units[k]) > 4 else (vt, 8)
            vas = va if isinstance(va, tuple) else (va, va)
            slot = k % NS
            rem = min(NS - 1, n - 1 - k)
            self.wait(vm=4 * rem)
            base = stage[0] if isinstance(dst, tuple) else dst
            for t in range(2):
                for hh in range(2):
                    for y in range(2):
                        A(f"ds_read_b64_tr_b16 {R(base+8*t+4*hh+2*y,2)}, {v(vas[t])} offset:{slot*4096+hh*2048+y*256+t*tstep}")
            if isinstance(dst, tuple):
                self.wait(lgkm=0)
                for i in range(4):
                    A(f"ds_write_b128 {v(stage[1])}, {R(base+4*i,4)} offset:{slot*4096+i*1024}")
            if k + NS < n:
                self.wait(lgkm=0)
                issue(k + NS)
        self.wait(lgkm=0)

    def selector(self, vs, tmp):
        A = self.A
        A(f"v_bfe_u32 {v(tmp)}, v0, 4, 1")
        A(f"v_lshlrev_b32 {v(tmp)}, 4, {v(tmp)}")
        A(f"v_mov_b32 {v(tmp+1)}, 0x3f80")
        A(f"v_lshlrev_b32 {v(tmp+1)}, {v(tmp)}, {v(tmp+1)}")
        A(f"v_bfe_u32 {v(tmp)}, v0, 5, 2")
        for i in range(4):
            A(f"v_cmp_eq_u32 vcc, {i}, {v(tmp)}")
            A(f"v_cndmask_b32 {v(vs+i)}, 0, {v(tmp+1)}, vcc")

    def ln(self):
        A = self.A
        sB = 62
        sk = A.newlabel('ln')
        A(f"s_cmp_ge_u32 {s(sB)}, 128")
        A(f"s_cbranch_scc1 {sk}")
        A(f"s_lshl_b32 s3, {s(sB)}, 2")
        A(f"s_add_u32 s3, s3, {s(sW)}")
        A("s_lshl_b32 s4, s3, 12")
        A("v_and_b32 v4, 0xf0, v0")
        A("v_and_b32 v5, 0x300, v0")
        A("v_lshl_or_b32 v4, v5, 2, v4")
        for u in range(4):
            A(f"buffer_load_dwordx4 {v(16+4*u,4)}, v4, {srd(SX)}, s4 offen offset:{u*256}")
        A("v_bfe_u32 v6, v0, 6, 2")
        A("v_lshlrev_b32 v6, 11, v6")
        A("v_bfe_u32 v7, v0, 4, 2")
        A("v_lshl_or_b32 v6, v7, 8, v6")
        A("v_lshrrev_b32 v7, 4, v5")
        A("v_or_b32 v6, v6, v7")
        A("s_lshr_b32 s5, s3, 3")
        A("s_lshl_b32 s5, s5, 15")
        A("s_and_b32 s6, s3, 1")
        A("s_lshl_b32 s6, s6, 10")
        A("s_add_u32 s5, s5, s6")
        A("s_bfe_u32 s6, s3, 0x20001")
        A("s_lshl_b32 s6, s6, 6")
        A("s_add_u32 s5, s5, s6")
        if XN: A(f"s_add_u32 s5, s5, {XN}")
        A("s_mov_b32 s6, 0xffff0000")
        self.wait(vm=0)
        X = 32
        for i in range(16):
            A(f"v_lshlrev_b32 {v(X+2*i)}, 16, {v(16+i)}")
            A(f"v_and_b32 {v(X+2*i+1)}, s6, {v(16+i)}")
        def rowsum(r):
            for sh in (8, 4, 2, 1):
                A(f"v_add_f32_dpp {v(r)}, {v(r)}, {v(r)} row_ror:{sh} row_mask:0xf bank_mask:0xf")
        for k in range(4):
            A(f"v_add_f32 {v(8+k)}, {v(X+k)}, {v(X+4+k)}")
        for i in range(2, 8):
            for k in range(4):
                A(f"v_add_f32 {v(8+k)}, {v(8+k)}, {v(X+4*i+k)}")
        A("v_add_f32 v8, v8, v9"); A("v_add_f32 v10, v10, v11"); A("v_add_f32 v8, v8, v10")
        rowsum(8)
        A(f"v_mul_f32 v8, {1/512}, v8")
        for i in range(32):
            A(f"v_sub_f32 {v(64+i)}, {v(X+i)}, v8")
        for k in range(4):
            A(f"v_mul_f32 {v(10+k)}, {v(64+k)}, {v(64+k)}")
        for i in range(1, 8):
            for k in range(4):
                A(f"v_fmac_f32 {v(10+k)}, {v(64+4*i+k)}, {v(64+4*i+k)}")
        A("v_add_f32 v10, v10, v11"); A("v_add_f32 v12, v12, v13"); A("v_add_f32 v10, v10, v12")
        rowsum(10)
        A(f"v_mul_f32 v10, {1/512}, v10")
        self.cvt(9, 8, 10)
        A("v_lshlrev_b32 v8, 16, v9")
        A("v_and_b32 v10, s6, v9")
        A(f"v_add_f32 v10, {hex(f2u(1e-5))}, v10")
        self.cvt(10, 10, 10)
        A("v_and_b32 v10, s6, v10")
        A("v_sqrt_f32 v10, v10")
        self.cvt(10, 10, 10)
        A("v_and_b32 v10, s6, v10")
        A("v_rcp_f32 v10, v10")
        for i in range(32):
            A(f"v_sub_f32 {v(64+i)}, {v(X+i)}, v8")
        for i in range(16):
            self.cvt(16+i, 64+2*i, 64+2*i+1)
        for i in range(16):
            A(f"v_lshlrev_b32 {v(X+2*i)}, 16, {v(16+i)}")
            A(f"v_and_b32 {v(X+2*i+1)}, s6, {v(16+i)}")
        for i in range(32):
            A(f"v_mul_f32 {v(X+i)}, {v(X+i)}, v10")
        for i in range(16):
            self.cvt(16+i, X+2*i, X+2*i+1)
        for u in range(4):
            A(f"buffer_store_dwordx4 {v(16+4*u,4)}, v6, {srd(SWS)}, s5 offen sc1")
            if u < 3: A("s_add_u32 s5, s5, 8192")
        A.label(sk)

    def xn_dma(self, sseg, sbuf):
        A = self.A
        A(f"s_lshl_b32 s3, {s(sseg)}, 15")
        A(f"s_lshl_b32 s4, {s(sW)}, 13")
        A("s_add_u32 s3, s3, s4")
        A(f"s_add_u32 m0, {s(sbuf)}, s4")
        if XN: A(f"s_add_u32 s3, s3, {XN}")
        for hlf in range(2):
            for q in range(4):
                A(f"buffer_load_dwordx4 v0, {srd(SWS)}, s3 offen offset:{q*1024} sc1 lds")
            if hlf == 0:
                A("s_add_u32 m0, m0, 4096")
                A("s_add_u32 s3, s3, 4096")

    def gemm1(self, mats, vXA, XB, mid=None):
        A = self.A
        def rd(ks):
            for tau in range(2):
                A(f"ds_read_b128 {v(XB+8*(ks%4)+4*tau,4)}, {v(vXA)} offset:{ks*2048+tau*1024}")
        rd(0); rd(1); rd(2)
        for ks in range(16):
            if ks + 3 < 16: rd(ks + 3)
            left = min(3, 15 - ks)
            self.wait(lgkm=2 * left)
            for (wb, ab, tr) in mats:
                for t in range(2):
                    for tau in range(2):
                        w_ = wb + (ks // 2) * 16 + 8 * t + 4 * (ks % 2)
                        x_ = XB + 8 * (ks % 4) + 4 * tau
                        d = ab + 8 * t + 4 * tau
                        c = None if ks == 0 else d
                        if tr: self.mfma(d, w_, x_, c)
                        else: self.mfma(d, x_, w_, c)
            if mid and ks == mid[0]: mid[1]()

    def proj(self, W2, vAct, AF, ACC, PK, sP):
        A = self.A
        for ks in range(4):
            for tau in range(2):
                A(f"ds_read_b128 {v(AF+16*tau+4*ks,4)}, {v(vAct)} offset:{tau*4096+ks*1024}")
        def epi(tp):
            ab = ACC + 16 * (tp % 2)
            for tau in range(2):
                pk = PK + 8 * (tp % 2) + 4 * tau
                for t in range(2):
                    d = ab + 8 * t + 4 * tau
                    self.cvt(pk + 2 * t, d, d + 1)
                    self.cvt(pk + 2 * t + 1, d + 2, d + 3)
                A(f"s_add_u32 s3, {s(sP)}, {(tp*2+tau)*NP*1024}")
                A(f"buffer_store_dwordx4 {v(pk,4)}, v0, {srd(SWS)}, s3 offen sc1")
        for tp in range(4):
            ab = ACC + 16 * (tp % 2)
            for ks in range(4):
                if tp == 0: self.wait(lgkm=6 - 2 * ks)
                for t in range(2):
                    for tau in range(2):
                        w_ = W2 + (tp * 2 + ks // 2) * 16 + 8 * t + 4 * (ks % 2)
                        d = ab + 8 * t + 4 * tau
                        self.mfma(d, w_, AF + 16 * tau + 4 * ks, None if ks == 0 else d)
                if ks == 1 and tp > 0: epi(tp - 1)
        epi(3)

    def bulk(self):
        A = self.A
        opt = self.opt
        sB, sH, sJ, sSeg, sBuf, sNx, sFl, sP, sFb, sT = 62, 63, 64, 65, 66, 67, 68, 69, 70, 71
        ACT = 65536
        A(f"s_sub_u32 {s(sB)}, {s(sSlot)}, 32")
        self.reset_flags(4, 6)
        self.ln()
        self.bar1_arrive(4)
        self.ts(2, 4)
        if opt.get('nobulk'):
            A("s_branch .Lend"); return
        A(f"s_mul_i32 {s(sH)}, {s(sB)}, 9363")
        A(f"s_lshr_b32 {s(sH)}, {s(sH)}, 16")
        A(f"s_mul_i32 s3, {s(sH)}, 7")
        A(f"s_sub_u32 {s(sJ)}, {s(sB)}, s3")
        vT, vq, vXA, vOne = 1, 4, 2, 3
        self.tr_addr(vT, 8)
        self.dma_voffs(vq, (0, 1, 2, 3), 8192, 16, 6, 8)
        A(f"s_lshl_b32 {s(sT)}, {s(sH)}, 8")
        units = []
        for m, sr in ((1, SWK), (2, SWV), (0, SWQ)):
            for u in range(8):
                units.append((sr, vq, (lambda u=u: A(f"s_add_u32 s3, {s(sT)}, {u*64*8192}")), 128 + (m * 8 + u) * 16))
        self.load_units(units, vT)
        self.ts(3, 8)
        self.bar1_wait(8, 9)
        self.ts(4, 8)
        A("s_barrier")
        A(f"s_mov_b32 {s(sSeg)}, {s(sJ)}")
        A(f"s_mov_b32 {s(sBuf)}, 0")
        self.xn_dma(sSeg, sBuf)
        A(f"v_mov_b32 {v(vXA)}, v0")
        A(f"v_mov_b32 {v(vOne)}, 1")
        A(f"s_mov_b32 {s(sFl)}, {HUGE}")
        self.wait(vm=0)
        XB, AQ, AK, AV, PK = 16, 48, 64, 80, 96
        top = A.newlabel('qkv')
        A.label(top)
        self.wait(vm=7)
        A("s_barrier")
        A(f"s_add_u32 {s(sNx)}, {s(sSeg)}, 7")
        A(f"s_xor_b32 {s(sBuf)}, {s(sBuf)}, 0x8000")
        self.xn_dma(sNx, sBuf)
        def flagA():
            self.wait(vm=8)
            A("s_mov_b64 exec, 1")
            A(f"buffer_store_byte {v(vOne)}, off, {srd(SWS)}, {s(sFl)} sc1")
            A("s_mov_b64 exec, -1")
        self.gemm1([(128 + 128, AK, True), (128 + 256, AV, False), (128, AQ, True)], vXA, XB, mid=(6, flagA))
        A(f"s_lshl_b32 s3, {s(sH)}, 6")
        A(f"s_add_u32 s3, s3, {s(sSeg)}")
        A(f"s_lshl_b32 {s(sFl)}, s3, 2")
        A(f"s_add_u32 {s(sFl)}, {s(sFl)}, {s(sW)}")
        A(f"s_add_u32 {s(sFl)}, {s(sFl)}, {FKV}")
        A("s_mul_i32 s3, s3, 24576")
        A(f"s_lshl_b32 s4, {s(sW)}, 10")
        A("s_add_u32 s3, s3, s4")
        A(f"s_add_u32 s3, s3, {QKV}")
        A("s_add_u32 s4, s3, s4")
        k = 0
        for (ab, boff, tr) in ((AK, 0, True), (AV, 8192, False), (AQ, 16384, True)):
            for o in range(2):
                pk = PK + 4 * k; k += 1
                for i in range(2):
                    d = ab + (8 * i + 4 * o if tr else 8 * o + 4 * i)
                    self.cvt(pk + 2 * i, d, d + 1)
                    self.cvt(pk + 2 * i + 1, d + 2, d + 3)
                if tr:
                    A(f"s_add_u32 s5, s3, {boff + o*4096}")
                else:
                    A(f"s_add_u32 s5, s4, {boff + o*1024}")
                A(f"buffer_store_dwordx4 {v(pk,4)}, v0, {srd(SWS)}, s5 offen sc1")
        A(f"v_xor_b32 {v(vXA)}, 0x8000, {v(vXA)}")
        if opt.get('tl'):
            A(f"s_mul_i32 s99, {s(sSeg)}, 9363")
            A("s_lshr_b32 s99, s99, 16")
            self.ts(16, 8, 99)
        A(f"s_mov_b32 {s(sSeg)}, {s(sNx)}")
        A(f"s_cmp_lt_u32 {s(sSeg)}, 64")
        A(f"s_cbranch_scc1 {top}")
        self.wait(vm=0)
        A("s_mov_b64 exec, 1")
        A(f"buffer_store_byte {v(vOne)}, off, {srd(SWS)}, {s(sFl)} sc1")
        A("s_mov_b64 exec, -1")
        A("s_barrier")
        self.ts(5, 8)
        if opt.get('stopA'):
            A("s_branch .Lend"); return
        A(f"s_lshr_b32 {s(sFb)}, {s(sB)}, 4")
        self.dma_voffs(vq, (0, 1, 2, 3), 3584, 16, 6, 8)
        self.dma_voffs(vq + 8, (0, 1, 2, 3), 1024, 16, 8, 8)
        A(f"s_lshl_b32 {s(sT)}, {s(sFb)}, 8")
        A(f"s_lshl_b32 {s(sNx)}, {s(sFb)}, 17")
        units = []
        for m, sr in ((0, SWG), (1, SWU)):
            for u in range(8):
                units.append((sr, vq, (lambda u=u: A(f"s_add_u32 s3, {s(sT)}, {u*64*3584}")), 128 + (m * 8 + u) * 16))
        for tp in range(4):
            for u in range(2):
                units.append((SWD, vq + 8, (lambda u=u, tp=tp: A(f"s_add_u32 s3, {s(sNx)}, {u*65536+tp*64}")), 384 + (tp * 2 + u) * 16))
        self.load_units(units, vT)
        A("s_barrier")
        self.ts(6, 8)
        A(f"s_and_b32 {s(sSeg)}, {s(sB)}, 15")
        A(f"s_lshl_b32 {s(sSeg)}, {s(sSeg)}, 2")
        A(f"s_mov_b32 {s(sBuf)}, 0")
        self.xn_dma(sSeg, sBuf)
        vAct, vActW = 4, 5
        A(f"v_mov_b32 {v(vXA)}, v0")
        A(f"v_add_u32 {v(vAct)}, {ACT}, v0")
        A(f"s_lshl_b32 s3, {s(sW)}, 10")
        A(f"v_add_u32 {v(vActW)}, s3, {v(vAct)}")
        A(f"s_mov_b32 {s(sFl)}, {HUGE}")
        self.wait(vm=0)
        AG, AU = 48, 64
        top = A.newlabel('ffn')
        A.label(top)
        self.wait(vm=9)
        A("s_barrier")
        A(f"s_add_u32 {s(sNx)}, {s(sSeg)}, 1")
        A(f"s_xor_b32 {s(sBuf)}, {s(sBuf)}, 0x8000")
        self.xn_dma(sNx, sBuf)
        def flagF():
            self.wait(vm=8)
            A("s_mov_b64 exec, 1")
            A(f"buffer_store_dword {v(vOne)}, off, {srd(SWS)}, {s(sFl)} sc1")
            A("s_mov_b64 exec, -1")
        self.gemm1([(128, AG, True), (256, AU, True)], vXA, XB, mid=(8, flagF))
        T = 80
        for i in range(16):
            A(f"v_mul_f32 {v(T+i)}, {hex(f2u(-LOG2E))}, {v(AG+i)}")
        for i in range(16):
            A(f"v_exp_f32 {v(T+i)}, {v(T+i)}")
        for i in range(16):
            A(f"v_add_f32 {v(T+i)}, 1.0, {v(T+i)}")
        for i in range(16):
            A(f"v_rcp_f32 {v(T+i)}, {v(T+i)}")
        for i in range(16):
            A(f"v_mul_f32 {v(AG+i)}, {v(AG+i)}, {v(AU+i)}")
        for i in range(16):
            A(f"v_mul_f32 {v(AG+i)}, {v(AG+i)}, {v(T+i)}")
        for tau in range(2):
            for t in range(2):
                d = AG + 8 * t + 4 * tau
                self.cvt(PK + 4 * tau + 2 * t, d, d + 1)
                self.cvt(PK + 4 * tau + 2 * t + 1, d + 2, d + 3)
            A(f"ds_write_b128 {v(vActW)}, {v(PK+4*tau,4)} offset:{tau*4096}")
        A(f"s_lshl_b32 s3, {s(sSeg)}, 2")
        A(f"s_add_u32 s3, s3, {s(sW)}")
        A(f"s_lshl_b32 {s(sFl)}, s3, 6")
        A(f"s_add_u32 {s(sFl)}, {s(sFl)}, {s(sFb)}")
        A(f"s_lshl_b32 {s(sFl)}, {s(sFl)}, 2")
        A(f"s_add_u32 {s(sFl)}, {s(sFl)}, {FP + 32*4}")
        A(f"s_mul_i32 s3, s3, {8*NP}")
        A(f"s_add_u32 s3, s3, {s(sFb)}")
        A("s_lshl_b32 s3, s3, 10")
        A(f"s_add_u32 {s(sP)}, s3, {PB + 32*1024}")
        self.wait(lgkm=0)
        A("s_barrier")
        self.proj(384, vAct, 16, 48, 96, sP)
        A(f"v_xor_b32 {v(vXA)}, 0x8000, {v(vXA)}")
        A(f"s_mov_b32 {s(sSeg)}, {s(sNx)}")
        A(f"s_and_b32 s3, {s(sSeg)}, 3")
        A("s_cmp_lg_u32 s3, 0")
        A(f"s_cbranch_scc1 {top}")
        self.wait(vm=0)
        A("s_mov_b64 exec, 1")
        A(f"buffer_store_dword {v(vOne)}, off, {srd(SWS)}, {s(sFl)} sc1")
        A("s_mov_b64 exec, -1")
        A("s_barrier")
        self.ts(7, 8)
        if opt.get('stopF'):
            A("s_branch .Lend"); return
        A(f"s_lshl_b32 {s(sNx)}, {s(sH)}, 17")
        A(f"s_lshl_b32 {s(sT)}, {s(sH)}, 8")
        self.dma_voffs(16, (2, 3, 0, 1), 8192, 128, 6, 20)
        units = []
        for m, sr in ((0, SWK), (1, SWV)):
            for ph in range(8):
                f = ph // 2 + 4 * (ph % 2)
                units.append((sr, 16, (lambda f=f: A(f"s_add_u32 s3, {s(sT)}, {f << 17}")), 128 + (m * 8 + ph) * 16))
        for tp in range(4):
            for u in range(2):
                units.append((SWO, vq + 8, (lambda u=u, tp=tp: A(f"s_add_u32 s3, {s(sNx)}, {u*65536+tp*64}")), 384 + (tp * 2 + u) * 16))
        self.load_units(units, vT)
        A("s_barrier")
        BIAS, SEL, vRL, vRL2, vOut, vFP, vIdx, vKw = 80, 88, 6, 7, 8, 9, 1, 2
        QFr, KFr, VFr, KM, VM, PF, MP, aK, aV = 16, 48, 32, 48, 64, 48, 104, 112, 120
        SX_, SM_, PX, PM, OA = 96, 104, 68, 92, 112
        TMX, TKT, TVT = 0, 8192, 12288
        sTq, sEh, sBlk, sRed = 72, 73, 74, 75
        A(f"s_and_b32 {s(sTq)}, {s(sW)}, 1")
        A(f"s_lshr_b32 {s(sEh)}, {s(sW)}, 1")
        A("v_bfe_u32 v10, v0, 6, 2")
        A("v_lshlrev_b32 v10, 3, v10")
        A("v_bfe_u32 v11, v0, 4, 2")
        A("v_add_u32 v10, v10, v11")
        A(f"s_lshl_b32 s3, {s(sTq)}, 2")
        A("v_add_u32 v12, s3, v10")
        A("v_lshrrev_b32 v11, 5, v0")
        A("v_and_b32 v11, 0x18, v11")
        A("v_sub_u32 v12, v12, v11")
        A(f"v_mov_b32 v13, {hex(f2u(-1e30))}")
        for jj in range(8):
            A(f"v_cmp_le_i32 vcc, {jj}, v12")
            A(f"v_cndmask_b32 {v(BIAS+jj)}, v13, 0, vcc")
        self.selector(SEL, 12)
        A("v_and_b32 v12, 0x300, v0")
        A("v_and_b32 v13, 0xf0, v0")
        A(f"v_lshl_or_b32 {v(vRL)}, v12, 2, v13")
        A(f"s_lshl_b32 s3, {s(sW)}, 8")
        A(f"v_add_u32 {v(vRL)}, s3, {v(vRL)}")
        A("v_mov_b32 v13, 0x200")
        A("v_cmp_gt_u32 vcc, v13, v0")
        A(f"v_mov_b32 v14, {HUGE}")
        A(f"v_cndmask_b32 {v(vRL2)}, v14, {v(vRL)}, vcc")
        A(f"s_and_b32 s3, {s(sH)}, 1")
        A("s_lshl_b32 s3, s3, 2")
        A("v_add_u32 v10, s3, v10")
        A("v_lshlrev_b32 v10, 10, v10")
        A("v_lshrrev_b32 v12, 5, v12")
        A(f"s_lshr_b32 s3, {s(sH)}, 1")
        A("s_lshl_b32 s3, s3, 6")
        A(f"s_lshl_b32 s4, {s(sW)}, 4")
        A("s_add_u32 s3, s3, s4")
        A("v_add3_u32 v10, v10, v12, s3")
        A(f"v_cndmask_b32 {v(vOut)}, v14, v10, vcc")
        A(f"v_lshrrev_b32 {v(vFP)}, 2, v0")
        for i in (1, 2):
            A(f"v_mov_b32 {v(PM+i)}, 0")
        A("v_mov_b32 v14, 0x4444")
        A("v_mov_b32 v15, 0xeeee")
        A("v_and_b32 v13, 0x20, v0")
        A("v_cmp_eq_u32 vcc, 0, v13")
        A(f"v_cndmask_b32 {v(vIdx)}, v15, v14, vcc")
        A("v_and_b32 v13, 0xf0, v0")
        A("v_lshlrev_b32 v13, 1, v13")
        A("v_bfe_u32 v14, v0, 8, 2")
        A("v_lshl_or_b32 v13, v14, 3, v13")
        A(f"s_lshl_b32 s3, {s(sW)}, 9")
        A(f"v_add_u32 {v(vKw)}, s3, v13")
        A(f"s_lshl_b32 s3, {s(sTq)}, 12")
        A(f"s_lshl_b32 s4, {s(sEh)}, 11")
        A("s_add_u32 s3, s3, s4")
        A(f"v_add_u32 {v(vActW)}, s3, {v(vAct)}")
        A(f"s_mov_b32 {s(sSeg)}, {s(sJ)}")
        self.ts(8, 10)
        top = A.newlabel('att')
        A.label(top)
        A(f"s_lshl_b32 {s(sBlk)}, {s(sH)}, 6")
        A(f"s_add_u32 {s(sBlk)}, {s(sBlk)}, {s(sSeg)}")
        A(f"s_mul_i32 s3, {s(sBlk)}, 24576")
        A(f"s_add_u32 s3, s3, {QKV}")
        A(f"s_lshl_b32 s4, {s(sTq)}, 12")
        A("s_add_u32 s4, s4, s3")
        A("s_add_u32 s4, s4, 16384")
        for ks in range(4):
            A(f"buffer_load_dwordx4 {v(QFr+4*ks,4)}, v0, {srd(SWS)}, s4 offen offset:{ks*1024} sc1")
        A("s_add_u32 s4, s3, 4096")
        for tau in range(2):
            for ks in range(4):
                A(f"buffer_load_dwordx4 {v(KFr+16*tau+4*ks,4)}, v0, {srd(SWS)}, {'s3' if tau == 0 else 's4'} offen offset:{ks*1024} sc1")
        A(f"s_lshl_b32 s4, {s(sEh)}, 12")
        A("s_add_u32 s4, s4, s3")
        A("s_add_u32 s4, s4, 8192")
        for i in range(4):
            A(f"buffer_load_dwordx4 {v(VFr+4*i,4)}, v0, {srd(SWS)}, s4 offen offset:{i*1024} sc1")
        self.wait(vm=4)
        for ks in range(4):
            for tau in range(2):
                d = SX_ + 4 * tau
                self.mfma(d, KFr + 16 * tau + 4 * ks, QFr + 4 * ks, BIAS + 4 * tau if ks == 0 else d)
        A(f"s_lshl_b32 s6, {s(sSeg)}, 13")
        A(f"s_lshl_b32 s3, {s(sW)}, 11")
        A("s_add_u32 s6, s6, s3")
        A(f"s_add_u32 s6, s6, {MEMG}")
        A("v_add_u32 v12, s3, v0")
        for i in range(8): A(f"v_mov_b64 {v(aK+2*i,2)}, 0")
        A(f"v_max3_f32 v10, {v(SX_)}, {v(SX_+1)}, {v(SX_+2)}")
        A(f"v_max3_f32 v11, {v(SX_+3)}, {v(SX_+4)}, {v(SX_+5)}")
        A(f"v_max3_f32 v10, v10, {v(SX_+6)}, {v(SX_+7)}")
        A("v_max_f32 v10, v10, v11")
        lp, ex = self.spin_begin()
        for u in range(2):
            A(f"buffer_load_dwordx4 {v(MP+4*u,4)}, v0, {srd(SWS)}, s6 offen offset:{u*1024} sc1")
        self.wait(vm=0)
        A(f"v_max3_u32 v11, {v(MP)}, {v(MP+1)}, {v(MP+2)}")
        A(f"v_max3_u32 v13, {v(MP+5)}, {v(MP+6)}, {v(MP+7)}")
        A(f"v_max3_u32 v11, v11, {v(MP+3)}, {v(MP+4)}")
        A("v_max_u32 v11, v11, v13")
        A("v_cmp_eq_u32 vcc, -1, v11")
        A(f"s_cbranch_vccz {ex}")
        self.spin_end(lp, ex)
        for u in range(2):
            A(f"ds_write_b128 v12, {v(MP+4*u,4)} offset:{TMX+u*1024}")
        if opt.get('tl'):
            A(f"s_mul_i32 s99, {s(sSeg)}, 9363")
            A("s_lshr_b32 s99, s99, 16")
            self.ts(28, 11, 99)
        A(f"v_xor_b32 v13, 12, {v(vKw)}")
        A("v_lshrrev_b32 v12, 1, v0")
        self.wait(lgkm=0)
        A("s_barrier")
        for ph in range(8):
            A(f"ds_read_b128 {v(PF+4*ph,4)}, v0 offset:{TMX+ph*1024}")
        for ph in range(8):
            self.wait(lgkm=7 - ph)
            for t in range(2): self.smf(aK + 4 * t, PF + 4 * ph, 128 + 16 * ph + 8 * t, vIdx)
        def post(ac):
            o = []
            for t in range(2):
                for i in range(2): o.append(f"v_add_f32 {v(ac+4*t+i)}, {v(ac+4*t+i)}, {v(ac+4*t+2+i)}")
                o.append(f"v_cvt_pk_bf16_f32 {v(ac+t)}, {v(ac+4*t)}, {v(ac+4*t+1)}")
            return o
        fill = [None] + post(aK) + [f"ds_write2st64_b32 {v(a_)}, {v(aK)}, {v(aK+1)} offset0:{TKT//256} offset1:{TKT//256+8}" for a_ in (vKw, 13)]
        fill += [f"s_lshl_b32 s3, {s(sW)}, 9", "v_add_u32 v13, s3, v12", f"s_lshl_b32 s3, {s(sEh)}, 10", "v_add_u32 v11, s3, v12"]
        for ph in range(8):
            for t in range(2):
                self.smf(aV + 4 * t, PF + 4 * ph, 256 + 16 * ph + 8 * t, vIdx)
                if fill:
                    x = fill.pop(0)
                    if x: A(x)
        assert not fill
        for x in post(aV): A(x)
        A(f"ds_write_b64 v13, {v(aV,2)} offset:{TVT}")
        self.wait(lgkm=0)
        A("s_barrier")
        for j in range(8):
            A(f"ds_read_b64_tr_b16 {v(KM+2*j,2)}, v12 offset:{TKT+(j//2)*512+(j%2)*2048}")
        for j in range(2):
            A(f"ds_read_b64 {v(VM+2*j,2)}, v11 offset:{TVT+j*512}")
        for ks in range(4):
            self.wait(lgkm=8 - 2 * ks)
            self.mfma(SM_, KM + 4 * ks, QFr + 4 * ks, None if ks == 0 else SM_)
        A(f"v_max3_f32 v10, v10, {v(SM_)}, {v(SM_+1)}")
        def xred(r, t, op):
            for sw in ('16', '32'):
                A(f"v_mov_b32 {v(t)}, {v(r)}")
                A(f"v_permlane{sw}_swap_b32 {v(t)}, {v(r)}")
                A(f"{op} {v(r)}, {v(r)}, {v(t)}")
        xred(10, 11, 'v_max_f32')
        A(f"s_mov_b32 s3, {hex(CSC)}")
        A("v_mul_f32 v10, s3, v10")
        for i in range(10):
            A(f"v_fma_f32 {v(SX_+i)}, {v(SX_+i)}, s3, -v10")
        for i in range(10):
            A(f"v_exp_f32 {v(SX_+i)}, {v(SX_+i)}")
        for i in range(4):
            self.cvt(PX + i, SX_ + 2 * i, SX_ + 2 * i + 1)
        self.cvt(PM, SM_, SM_ + 1)
        self.cvt(PM + 3, SM_, SM_ + 1)
        self.wait(lgkm=0)
        for i in range(4):
            self.mfma(OA + 4 * i, VFr + 4 * i, PX, None)
        for i in range(4):
            A(f"v_mfma_f32_16x16x16_bf16 {v(OA+4*i,4)}, {v(VM+2*(i//2),2)}, {v(PM+2*(i%2),2)}, {v(OA+4*i,4)}")
        A(f"v_add_f32 v11, {v(SM_)}, {v(SM_+1)}")
        A(f"v_add_f32 v11, v11, {v(SX_)}")
        for i in range(1, 8):
            A(f"v_add_f32 v11, v11, {v(SX_+i)}")
        xred(11, 12, 'v_add_f32')
        A("v_rcp_f32 v11, v11")
        for i in range(16):
            A(f"v_mul_f32 {v(OA+i)}, {v(OA+i)}, v11")
        for k2 in range(2):
            for i in range(4):
                self.cvt(PK + 4 * k2 + i, OA + 8 * k2 + 2 * i, OA + 8 * k2 + 2 * i + 1)
            A(f"ds_write_b128 {v(vActW)}, {v(PK+4*k2,4)} offset:{k2*1024}")
        A(f"s_lshl_b32 s3, {s(sSeg)}, 2")
        A(f"s_add_u32 s3, s3, {s(sW)}")
        A(f"s_lshl_b32 {s(sFl)}, s3, 6")
        A(f"s_add_u32 {s(sFl)}, {s(sFl)}, {s(sH)}")
        A(f"s_lshl_b32 {s(sFl)}, {s(sFl)}, 2")
        A(f"s_add_u32 {s(sFl)}, {s(sFl)}, {FP}")
        A(f"s_mul_i32 s3, s3, {8*NP}")
        A(f"s_add_u32 s3, s3, {s(sH)}")
        A("s_lshl_b32 s3, s3, 10")
        A(f"s_add_u32 {s(sP)}, s3, {PB}")
        self.wait(lgkm=0)
        A("s_barrier")
        self.proj(384, vAct, 16, 48, 96, sP)
        A(f"s_lshl_b32 {s(sRed)}, {s(sSeg)}, 15")
        A(f"buffer_load_dwordx2 {v(14,2)}, {v(vOut)}, {srd(SX)}, {s(sRed)} offen")
        self.wait(vm=1)
        A("s_mov_b64 exec, 1")
        A(f"buffer_store_dword {v(vOne)}, off, {srd(SWS)}, {s(sFl)} sc1")
        A("s_mov_b64 exec, -1")
        A("s_barrier")
        self.ts(40, 10, 99)
        A(f"s_lshl_b32 s6, {s(sSeg)}, 2")
        A(f"s_lshr_b32 s3, {s(sH)}, 3")
        A("s_add_u32 s6, s6, s3")
        A("s_lshl_b32 s6, s6, 8")
        A(f"s_add_u32 s6, s6, {FP}")
        lp, ex = self.spin_begin()
        A(f"buffer_load_dword v10, {v(vFP)}, {srd(SWS)}, s6 offen sc1")
        self.wait(vm=0)
        A("v_cmp_eq_u32 vcc, 1, v10")
        A(f"s_and_b32 s5, vcc_hi, {(1 << (NP-32)) - 1}")
        A(f"s_xor_b32 s5, s5, {(1 << (NP-32)) - 1}")
        A("s_not_b32 s4, vcc_lo")
        A("s_or_b32 s4, s4, s5")
        A(f"s_cbranch_scc0 {ex}")
        self.spin_end(lp, ex)
        A(f"s_lshl_b32 s3, {s(sSeg)}, 5")
        A(f"s_add_u32 s3, s3, {s(sH)}")
        A(f"s_mul_i32 s3, s3, {NP*1024}")
        A(f"s_add_u32 s3, s3, {PB}")
        RD = 16
        for u in range(12):
            A(f"buffer_load_dwordx4 {v(RD+4*u,4)}, {v(vRL if u < 11 else vRL2)}, {srd(SWS)}, s3 offen sc1")
            if u < 11: A("s_add_u32 s3, s3, 4096")
        RA, RB = 64, 68
        for u in range(12):
            self.wait(vm=11 - u)
            d = RA if u < 8 else RB
            self.mfma(d, SEL, RD + 4 * u, None if u in (0, 8) else d)
        A("s_mov_b32 s6, 0xffff0000")
        A("v_lshlrev_b32 v72, 16, v14"); A("v_and_b32 v73, s6, v14")
        A("v_lshlrev_b32 v74, 16, v15"); A("v_and_b32 v75, s6, v15")
        def rnd4(b, t):
            self.cvt(t, b, b + 1); self.cvt(t + 1, b + 2, b + 3)
            A(f"v_lshlrev_b32 {v(b)}, 16, {v(t)}"); A(f"v_and_b32 {v(b+1)}, s6, {v(t)}")
            A(f"v_lshlrev_b32 {v(b+2)}, 16, {v(t+1)}"); A(f"v_and_b32 {v(b+3)}, s6, {v(t+1)}")
        rnd4(RA, 10)
        for i in range(4): A(f"v_add_f32 {v(72+i)}, {v(72+i)}, {v(RA+i)}")
        rnd4(72, 10)
        rnd4(RB, 12)
        for i in range(4): A(f"v_add_f32 {v(72+i)}, {v(72+i)}, {v(RB+i)}")
        self.cvt(10, 72, 73); self.cvt(11, 74, 75)
        A(f"buffer_store_dwordx2 {v(10,2)}, {v(vOut)}, {srd(SOUT)}, {s(sRed)} offen")
        self.ts(52, 10, 99)
        A(f"s_add_u32 {s(sSeg)}, {s(sSeg)}, 7")
        A(f"s_cmp_lt_u32 {s(sSeg)}, 64")
        A(f"s_cbranch_scc1 {top}")
        A("s_branch .Lend")

    def rec(self):
        A = self.A
        A.label('.Lrec')
        self.reset_flags(4, 6)
        if self.opt.get('norec'):
            self.bar1_arrive(4)
            A("s_branch .Lend"); return
        from rec import emit_rec
        emit_rec(self)

    def build(self):
        A = self.A
        self.prologue()
        self.bulk()
        self.rec()
        A.label('.Lend')
        A("s_endpgm")
        if 'probe' in self.opt:
            i0 = A.lines.index('.LcontF:')
            idx = [i for i in range(i0, len(A.lines)) if not A.lines[i].endswith(':') and not A.lines[i].startswith('s_memtime')]
            A.lines.insert(idx[self.opt['probe']], 's_memtime s[90:91]')
        body = A.finalize(timed=not self.opt.get('untimed'))
        ref = open(os.path.join(os.path.dirname(os.path.abspath(__file__)), '..', 'cdna_kernels', NAME + '.s.ref')).read()
        head = []
        for l in ref.split('\n'):
            if l.startswith('; @launch'):
                head.append(f'; @launch grid=(256,1,1) block=(256,1,1) lds={LDS_BYTES}')
            elif l.startswith(';') or l.startswith('.'):
                head.append(l)
            else:
                break
        tail = f"""
.section .rodata,"a"
.p2align 6
.amdhsa_kernel {NAME}_kernel
  .amdhsa_next_free_vgpr 512
  .amdhsa_next_free_sgpr 102
  .amdhsa_accum_offset 256
  .amdhsa_group_segment_fixed_size 0
  .amdhsa_kernarg_size 112
  .amdhsa_user_sgpr_count 2
  .amdhsa_user_sgpr_kernarg_segment_ptr 1
  .amdhsa_system_sgpr_workgroup_id_x 1
.end_amdhsa_kernel
"""
        return '\n'.join(head) + f'\n{NAME}_kernel:\n' + body + tail

if __name__ == '__main__':
    opt = {}
    out = None
    for a_ in sys.argv[1:]:
        if a_.startswith('-o'): out = a_[2:]
        elif '=' in a_:
            k, x = a_.split('='); opt[k] = int(x, 0)
        else: opt[a_] = 1
    sys.modules['gen'] = sys.modules['__main__']
    txt = Gen(opt).build()
    if out is None:
        out = os.path.join(os.path.dirname(os.path.abspath(__file__)), '..', 'cdna_kernels', NAME + '.s')
    open(out, 'w').write(txt)
    print('wrote', out, len(txt), 'bytes')
```

```python
from asmlib import *
import gen as G
from gen import *

MX, OX, QT, KT, SELL, ZL, KVB, WLB = 0, 0, 8192, 10240, 14336, 15360, 16384, 49152
NSL = 7

def emit_rec(g):
    A = g.A
    opt = g.opt
    sH, sS, sMemRd, sMemWr, sMemRst, sPartWr, sPartRd, sKV, sPub, sPar = range(62, 72)
    sRdy, sHi, sC, sT, sT2, sDb, sFKV, sMW0, sKVv, sKXo = 72, 76, 78, 80, 81, 82, 83, 84, 85, 61
    sRing, sSpin, sKVL, sMR0, sK01, sS1, sVXo = 62, 60, 7, 6, 5, 81, 63
    sX = {1: 74, 2: 75, 3: 79}
    s8K, sBlk = 2, 3
    vIdx, vKw, vTq, vPS, vPL, vMS, vWL, vMX, vOw, vFl, vPub = range(1, 12)
    CON = 12
    T0, T1, T2, T3 = 20, 21, 22, 23
    PR, aQ, aK, aV = 24, 32, 40, 72
    wait, mfma, smf, cvt = g.wait, g.mfma, g.smf, g.cvt

    A(f"s_mov_b32 {s(sH)}, {s(sSlot)}")
    A(f"s_mul_i32 {s(sLB)}, {s(sW)}, {NSL*4096}")
    A(f"s_add_u32 {s(sLB)}, {s(sLB)}, {WLB}")
    def bf(d, off, w): A(f"v_bfe_u32 {v(d)}, v0, {off}, {w}")
    bf(16, 4, 1); bf(17, 6, 1)
    A(f"v_and_b32 {v(vPL)}, 0x3a0, v0")
    A(f"v_lshl_or_b32 {v(vPL)}, v16, 6, {v(vPL)}")
    A(f"v_lshl_or_b32 {v(vPL)}, v17, 4, {v(vPL)}")
    bf(17, 6, 2); bf(18, 8, 2); bf(19, 5, 1)
    A("v_lshlrev_b32 v20, 4, v16")
    A("v_lshl_or_b32 v20, v19, 6, v20")
    A("v_lshl_or_b32 v20, v18, 2, v20")
    A(f"v_mov_b32 v21, {HUGE}")
    A("v_cmp_eq_u32 vcc, 0, v17")
    A(f"v_cndmask_b32 {v(vMS)}, v21, v20, vcc")
    for i in range(4): A(f"v_mov_b32 {v(24+i)}, -1")
    A(f"s_and_b32 s3, {s(sH)}, 6")
    A(f"s_and_b32 s4, {s(sW)}, 1")
    A("s_or_b32 s3, s3, s4")
    A("s_lshl_b32 s3, s3, 10")
    A(f"s_lshr_b32 s4, {s(sH)}, 3")
    A("s_lshl_b32 s4, s4, 8")
    A("s_add_u32 s3, s3, s4")
    A(f"s_lshr_b32 s4, {s(sW)}, 1")
    A("s_lshl_b32 s4, s4, 7")
    A("s_add_u32 s3, s3, s4")
    A(f"s_and_b32 s4, {s(sH)}, 1")
    A("s_lshl_b32 s4, s4, 5")
    A("s_add_u32 s3, s3, s4")
    A(f"s_add_u32 {s(sMW0)}, s3, {MEMR}")
    A(f"s_add_u32 {s(sPub)}, s3, {MEMG}")
    for i in range(4):
        A(f"s_add_u32 s3, {s(sMW0)}, {i*8192}")
        A(f"buffer_store_dword v24, {v(vMS)}, {srd(SWS)}, s3 offen sc1")
    A(f"s_lshl_b32 s3, {s(sH)}, 13")
    A(f"s_lshl_b32 s4, {s(sW)}, 11")
    A("s_add_u32 s3, s3, s4")
    A(f"s_add_u32 {s(sPartRd)}, s3, {PART}")
    for u in range(2):
        A(f"buffer_store_dwordx4 {v(24,4)}, v0, {srd(SWS)}, {s(sPartRd)} offen offset:{u*1024} sc1")
    sk = A.newlabel('xm')
    A(f"s_cmp_lg_u32 {s(sW)}, 0")
    A(f"s_cbranch_scc1 {sk}")
    A("s_mov_b64 exec, 1")
    A(f"s_lshl_b32 s3, 1, {s(sXcc)}")
    A("v_mov_b32 v21, s3")
    A(f"buffer_atomic_or v21, off, {srd(SDBG)}, 0 offset:8 sc1")
    A("s_mov_b64 exec, -1")
    A.label(sk)
    vT, vq, vq2, vTo, tmp, STA, vTc = 28, 32, 36, 29, 30, 48, 31
    sRC = 88
    vWa, vWc = 40, 42
    g.tr_addr(vT, tmp)
    bf(tmp, 7, 1)
    A(f"v_lshlrev_b32 {v(tmp)}, 9, {v(tmp)}")
    A(f"v_xor_b32 {v(vTo)}, {v(tmp)}, {v(vT)}")
    g.dma_voffs(vq2, (0, ('c', 6), 1, 2), 1024, 8, 8, tmp)
    g.wide_voffs(vq, (2, 3, 0), 8192, [0, 2 * 8192, 128 * 8192, 130 * 8192], tmp)
    g.wide_tr(vWc + 1, tmp)
    A(f"v_add_u32 {v(vWL)}, {s(sLB)}, v0")
    A(f"s_lshl_b32 {s(sRC)}, {s(sW)}, 13")
    A(f"s_add_u32 {s(sRC)}, {s(sRC)}, {KVB}")
    A(f"s_sub_u32 s3, {s(sRC)}, {s(sLB)}")
    A(f"v_add_u32 {v(vTc)}, s3, {v(vT)}")
    A(f"v_add_u32 {v(vWa)}, {s(sLB)}, {v(vWc+1)}")
    A(f"v_add_u32 {v(vWc)}, {s(sRC)}, {v(vWc+1)}")
    A(f"s_xor_b32 s3, {s(sW)}, 1")
    A(f"s_mul_i32 s3, s3, {NSL*4096}")
    A(f"s_add_u32 s3, s3, {WLB}")
    A(f"v_add_u32 {v(vWa+1)}, s3, {v(vWc+1)}")
    A(f"v_xor_b32 {v(vWc+1)}, 8192, {v(vWc)}")
    assert KVB % 16384 == 0
    A(f"s_lshl_b32 {s(sT)}, {s(sH)}, 8")
    A(f"s_lshl_b32 s3, {s(sW)}, 17")
    A(f"s_add_u32 {s(sT)}, {s(sT)}, s3")
    A(f"s_lshl_b32 {s(sT2)}, {s(sH)}, 17")
    W = {}
    keys = [('q', ls) for ls in range(2, 8)] + [('k', ls) for ls in range(2, 8)] + [('v', ls) for ls in range(8)]
    keys += [('o', 0, 0), ('o', 1, 0)] + [('o', 0, k) for k in range(1, 4)]
    for i, key in enumerate(keys): W[key] = 112 + 16 * i
    assert len(keys) == 25
    W.update({('q', 0): 48, ('q', 1): 64, ('k', 0): 80, ('k', 1): 96, ('o', 1, 1): 40, ('o', 1, 2): 96, ('o', 1, 3): 24})
    SLOT = {('o', 1, 1): 0, ('o', 1, 2): 1, ('o', 1, 3): 2, ('q', 0): 3, ('q', 1): 4, ('k', 0): 5, ('k', 1): 6}
    SR = {'q': SWQ, 'k': SWK, 'v': SWV}
    def lsof(f): return 2 * (f % 4) + f // 4
    groups = [[('o', 1, k)] for k in range(1, 4)] + [[('o', 0, 3)], [('o', 0, 0), ('o', 1, 0)], [('o', 0, 1), ('o', 0, 2)]]
    for m_ in 'kvq':
        for f in (0, 4, 2, 6): groups.append([(m_, lsof(f)), (m_, lsof(f + 1))])
    def gloc(gi):
        if gi < 3: return sLB, gi * 4096, vT
        return ((sRC, 0, vTc), (sLB, 3 * 4096, vT), (sLB, 5 * 4096, vT))[gi % 3]
    def g_issue(gi):
        sb, off, _ = gloc(gi)
        key = groups[gi][0]
        if key[0] != 'o':
            A(f"s_xor_b32 s3, {s(sT)}, {(key[1] // 2 + 4 * (key[1] % 2)) << 17}")
            g.wide_issue(SR[key[0]], vq, sb, off, 256 * 8192)
            return
        for j, key in enumerate(groups[gi]):
            A(f"s_add_u32 m0, {s(sb)}, {off + j * 4096}")
            A(f"s_xor_b32 s3, {s(sW)}, {key[2]}")
            A("s_lshl_b32 s3, s3, 15")
            A(f"s_add_u32 s3, s3, {s(sT2)}")
            if key[1]: A("s_add_u32 s3, s3, 128")
            for q in range(4):
                A(f"buffer_load_dwordx4 {v(vq2+q)}, {srd(SWO)}, s3 offen offset:{q*1024} lds")
    nokv = opt.get('nokv')
    vDb, vL4, M0R, sOK = 45, 46, 16, 87
    def warm():
        for u in range(2):
            A(f"buffer_load_dwordx4 {v(24,4)}, v0, {srd(SWS)}, {s(sPartRd)} offen offset:{u*1024} sc1")
        A(f"s_and_b32 s3, {s(sH)}, 3")
        A("s_lshl_b32 s3, s3, 13")
        A(f"s_add_u32 s3, s3, {s(sMemRd)}")
        for u in range(2):
            A(f"buffer_load_dwordx4 {v(24,4)}, v0, {srd(SWS)}, s3 offen offset:{u*1024} sc1")
    def hk_dbg(): A(f"buffer_load_dword {v(vDb)}, {v(vL4)}, {srd(SDBG)}, 0 offen sc1")
    def hk_flag():
        A("s_mov_b32 s6, 0x02020202")
        A("s_mov_b32 s7, 0x02020202")
        A(f"v_cmp_eq_u32 vcc, 32, {v(vDb)}")
        A("s_and_b64 s[4:5], vcc, s[6:7]")
        A("s_cmp_eq_u64 s[4:5], s[6:7]")
        A(f"s_cselect_b32 {s(sOK)}, 1, 0")
        A(f"s_cselect_b32 s4, {s(sFKV)}, {HUGE}")
        A(f"buffer_load_dword {v(vFl)}, {v(vL4)}, {srd(SWS)}, s4 offen sc1")
        warm()
    def hk_kv():
        if nokv: return
        A("s_mov_b32 s5, 0x01010101")
        A(f"v_cmp_eq_u32 {s(sRdy,2)}, s5, {v(vFl)}")
        A(f"s_lshl_b32 s3, {s(sW)}, 12")
        A(f"s_add_u32 m0, s3, {KVB}")
        A(f"s_bitcmp1_b32 {s(sRdy)}, 0")
        A(f"s_cselect_b32 s4, {s(sKV)}, {HUGE}")
        A(f"s_add_u32 s5, s4, {8192 - 2048}")
        for j in range(4): A(f"buffer_load_dwordx4 v0, {srd(SWS)}, {'s4' if j < 2 else 's5'} offen offset:{j*1024} sc1 lds")
    GA = opt.get('ga', 10)
    assert GA + 3 <= 13
    hooks = {GA: (13, hk_dbg), 13: (16, hk_flag), 16: (99, hk_kv)}
    def park(base, slot):
        for i in range(4): A(f"ds_write_b128 {v(vWL)}, {R(base+4*i,4)} offset:{slot*4096+i*1024}")
    def load_weights(after_issue):
        n = len(groups)
        seq = []
        def counted(tag, f):
            k = len(A.lines); f()
            seq.append((tag, sum(1 for l in A.lines[k:] if l.startswith('buffer_'))))
        for gi in range(6): counted(gi, lambda: g_issue(gi))
        after_issue(sum(x[1] for x in seq))
        seq.append((n - 1, 2))
        for gi in range(n):
            last = max(i for i, x in enumerate(seq) if x[0] == gi)
            wait(vm=sum(x[1] for x in seq[last + 1:]))
            _, off, va = gloc(gi)
            if gi >= 6:
                A("s_barrier")
                for j, key in enumerate(groups[gi]): g.wide_read(W[key], (vWa if va == vT else vWc) + j, off)
                wait(lgkm=0)
                A("s_barrier")
                if gi + 3 < n: counted(gi + 3, lambda: g_issue(gi + 3))
                if gi in hooks: counted(*hooks[gi])
                continue
            for j, key in enumerate(groups[gi]):
                base = STA + 16 * gi if gi < 3 else W[key]
                va_ = vTo if key[0] == 'o' and key[2] == 0 else va
                assert va_ != vTo or va == vT
                for t in range(2):
                    for hh in range(2):
                        for y in range(2):
                            A(f"ds_read_b64_tr_b16 {R(base+8*t+4*hh+2*y,2)}, {v(va_)} offset:{off+j*4096+hh*2048+y*256+t*8}")
            wait(lgkm=0)
            if gi < 3: park(STA + 16 * gi, gi)
            elif gi + 3 < n: counted(gi + 3, lambda: g_issue(gi + 3))
        for key in (('q', 0), ('q', 1), ('k', 0), ('k', 1)): park(W[key], SLOT[key])
        wait(lgkm=0)
    def stage_list(key, t):
        return [f"ds_read_b128 {v(W[key]+8*t+4*i,4)}, {v(vWL)} offset:{SLOT[key]*4096+t*2048+i*1024}" for i in range(2)]
    STG = []
    for key, t in ((('q', 0), 0), (('k', 0), 0), (('k', 0), 1), (('k', 1), 0), (('k', 1), 1), (('q', 1), 1), (('q', 0), 1), (('q', 1), 0)):
        STG += stage_list(key, t)

    def after_issue(nvm):
        g.bar1_arrive(21, vm=nvm)
        A("v_mov_b32 v20, 0x4444")
        A("v_mov_b32 v21, 0xeeee")
        A("v_cmp_eq_u32 vcc, 0, v19")
        A(f"v_cndmask_b32 {v(vIdx)}, v21, v20, vcc")
        A("v_and_b32 v22, 0x80, v0")
        A("v_cmp_eq_u32 vcc, 0, v22")
        A("v_cndmask_b32 v20, v21, v20, vcc")
        A(f"v_lshl_or_b32 {v(vIdx)}, v20, 16, {v(vIdx)}")
        A(f"s_not_b64 {s(sHi,2)}, vcc")
        bf(20, 4, 4); bf(21, 9, 1)
        A("v_mul_u32_u24 v21, 0x140, v21")
        A("v_lshlrev_b32 v20, 3, v20")
        A("v_xor_b32 v20, v20, v21")
        bf(21, 8, 1)
        A("v_lshl_or_b32 v20, v21, 2, v20")
        A(f"s_lshl_b32 s3, {s(sW)}, 9")
        A(f"s_add_u32 s3, s3, {QT}")
        A(f"v_add_u32 {v(vKw)}, s3, v20")
        bf(20, 6, 4)
        A("v_lshlrev_b32 v20, 3, v20")
        A("v_mul_u32_u24 v21, 0x140, v16")
        A(f"v_xor_b32 {v(vTq)}, v20, v21")
        A("v_mul_u32_u24 v21, 0x140, v19")
        A("v_xor_b32 v20, v20, v21")
        A("v_lshl_or_b32 v20, v16, 7, v20")
        A(f"v_lshl_or_b32 {v(vTq)}, v20, 16, {v(vTq)}")
        for i in range(4): A(f"v_mov_b32 {v(CON+i)}, 0")
        A(f"ds_write_b128 v0, {v(CON,4)} offset:{ZL}")
        bf(20, 9, 1)
        A(f"v_lshlrev_b32 {v(vPS)}, 15, v20")
        A(f"v_lshl_or_b32 {v(vPS)}, v17, 13, {v(vPS)}")
        bf(20, 8, 1)
        A(f"v_lshl_or_b32 {v(vPS)}, v20, 12, {v(vPS)}")
        A("v_and_b32 v20, 0x30, v0")
        A(f"v_or_b32 {v(vPS)}, {v(vPS)}, v20")
        A(f"v_lshrrev_b32 {v(vOw)}, 4, v22")
        A("v_and_b32 v20, 0x70, v0")
        A(f"v_or_b32 {v(vOw)}, {v(vOw)}, v20")
        A(f"v_lshl_or_b32 {v(vOw)}, v18, 7, {v(vOw)}")
        A(f"s_lshl_b32 s3, {s(sW)}, 9")
        if OX: A(f"s_add_u32 s3, s3, {OX}")
        A(f"v_add_u32 {v(vOw)}, s3, {v(vOw)}")
        A(f"s_lshl_b32 s3, {s(sW)}, 11")
        A(f"v_add_u32 {v(vMX)}, s3, v0")
        A(f"s_add_u32 {s(sMemRd)}, s3, {MEMR}")
        g.selector(24, 20)
        A(f"ds_write_b128 v0, {v(24,4)} offset:{SELL}")
        A(f"s_mov_b32 {s(sC)}, {hex(CSC)}")
        for i in range(4): A(f"v_mov_b32 {v(CON+i)}, {'0x3f003f00' if i < 2 else '0x3f803f80'}")
        for k in range(1, 4): A(f"s_mov_b32 {s(sX[k])}, {512*k}")
        A(f"s_lshl_b32 s3, {s(sW)}, 16")
        A(f"s_lshl_b32 s4, {s(sH)}, 6")
        A("s_add_u32 s3, s3, s4")
        A(f"s_add_u32 {s(sPartWr)}, s3, {PART}")
        A(f"s_mul_i32 s3, {s(sH)}, {64*24576}")
        A(f"s_lshl_b32 s4, {s(sW)}, 11")
        A("s_add_u32 s3, s3, s4")
        A(f"s_add_u32 {s(sKV)}, s3, {QKV}")
        A(f"s_lshl_b32 s3, {s(sH)}, 8")
        A(f"s_add_u32 {s(sFKV)}, s3, {FKV}")
        A(f"s_mov_b32 {s(sPar)}, 0")
        A(f"s_mov_b64 {s(sRdy,2)}, 0")
        A(f"s_lshl_b32 s3, {s(sH)}, 2")
        A(f"s_add_u32 s3, s3, {s(sW)}")
        A("s_lshl_b32 s3, s3, 12")
        A(f"s_add_u32 {s(sDb)}, s3, {DBGW}")
        A("v_lshl_or_b32 v44, v17, 1, v16")
        A("v_lshlrev_b32 v44, 10, v44")
        A("v_lshl_or_b32 v44, v18, 8, v44")
        A("v_lshl_or_b32 v44, v19, 4, v44")
        A(f"v_lshrrev_b32 {v(vL4)}, 2, v0")
        A(f"s_lshl_b32 s3, {s(sW)}, 5")
        for ls in range(2):
            A(f"buffer_load_dwordx4 {v(M0R+4*ls,4)}, v44, {srd(SM0)}, s3 offen offset:{ls*128}")
        wait(lgkm=0)
    load_weights(after_issue)
    g.ts(3, 44)
    A(f"s_cmp_lg_u32 {s(sOK)}, 0")
    A("s_cbranch_scc1 .Lb1ok")
    g.bar1_wait(vDb, vL4)
    warm()
    wait(vm=0)
    A.label('.Lb1ok')
    g.ts(4, 44)
    A(f"v_readlane_b32 s3, {v(vDb)}, 2")
    A(f"s_bcnt1_i32_b32 {s(sT)}, s3")
    A("s_mov_b32 s4, 0x05040100")
    A("s_mov_b32 s5, 0x07060302")
    for ls in range(2):
        i0 = M0R + 4 * ls; o = PR + 4 * ls
        A(f"v_perm_b32 {v(o)}, {v(i0+2)}, {v(i0)}, s4")
        A(f"v_perm_b32 {v(o+1)}, {v(i0+2)}, {v(i0)}, s5")
        A(f"v_perm_b32 {v(o+2)}, {v(i0+3)}, {v(i0+1)}, s4")
        A(f"v_perm_b32 {v(o+3)}, {v(i0+3)}, {v(i0+1)}, s5")
    A(f"s_lshl_b32 s3, {s(sW)}, 11")
    A(f"s_add_u32 s4, s3, {MEMG}")
    A(f"s_cmp_eq_u32 {s(sH)}, 0")
    A(f"s_cselect_b32 s4, s4, {HUGE}")
    for u in range(2):
        A(f"buffer_store_dwordx4 {v(PR+4*u,4)}, v0, {srd(SWS)}, s4 offen offset:{u*1024} sc1")
    A(f"s_mov_b32 {s(sRing)}, 0")
    A(f"s_mov_b32 {s(sMemWr)}, {s(sMW0)}")
    A(f"s_mov_b32 {s(sMR0)}, {s(sMemRd)}")
    A(f"s_mov_b32 {s(sSpin)}, {SPIN}")
    A(f"s_mov_b32 {s(sCnt)}, {SPIN}")
    A(f"s_lshl_b32 s3, {s(sW)}, 12")
    A(f"s_add_u32 {s(sKVL)}, s3, {KVB}")
    A(f"s_mov_b32 {s(sKXo)}, {KVB + 16384}")
    A(f"s_mov_b32 {s(sK01)}, 0x01010101")
    A(f"s_mov_b32 {s(s8K)}, 8192")
    A(f"s_mov_b32 {s(sBlk)}, 24576")
    A(f"s_lshl_b32 s0, {s(sW)}, 11")
    A("s_add_u32 s0, s0, 24576")

    def kv_wait(back):
        A(f"v_lshrrev_b32 {v(T3)}, 2, v0")
        A(f"s_mov_b32 s4, {s(sSpin)}")
        lp = A.newlabel('kvw')
        A.label(lp)
        A(f"buffer_load_dword {v(vFl)}, {v(T3)}, {srd(SWS)}, {s(sFKV)} offen sc1")
        wait(vm=0)
        A(f"v_cmp_eq_u32 {s(sRdy,2)}, {s(sK01)}, {v(vFl)}")
        A("s_nop 1")
        A(f"s_bitcmp1_b64 {s(sRdy,2)}, {s(sS1)}")
        A(f"s_cbranch_scc1 {back}")
        A("s_sub_u32 s4, s4, 1")
        A(f"s_cbranch_scc0 {lp}")
        A(f"s_mov_b32 {s(sSpin)}, 0")
        A(f"s_branch {back}")
    def z64(r, c=0): return f"v_mov_b64 {v(r,2)}, {c}"
    ZQ = [z64(aQ + 2 * i) for i in range(4)]
    ZACC = [z64(aK + 2 * i) for i in range(4)]
    ADDR = [f"v_xor_b32 {v(T0+k)}, {2048*(k+1)}, {v(vMX)}" for k in range(3)]
    def dma_txt(j): return f"buffer_load_dwordx4 v0, {srd(SWS)}, {s(sKV if j < 2 else sKVv)} offen offset:{j*1024} sc1 lds"
    NXT = [f"s_add_u32 {s(sKV)}, {s(sKV)}, {s(sBlk)}", f"s_mov_b32 {s(sVXo)}, {s(sKVL)}", f"s_xor_b32 {s(sKVL)}, {s(sKVL)}, {KVB ^ (KVB + 16384)}",
           f"s_xor_b32 {s(sKXo)}, {s(sKXo)}, {KVB ^ (KVB + 16384)}", f"s_mov_b32 m0, {s(sKVL)}", f"s_add_u32 {s(sKVv)}, {s(sKV)}, {8192 - 2048}"]

    g.ts(5, 16)
    A(f"s_mov_b32 {s(sS1)}, 0")
    if nokv:
        wait(vm=0)
        for x in ZQ: A(x)
        for i in range(32): A(f"ds_write_b128 v0, {v(aQ+4,4)} offset:{KVB+i*1024}")
    else:
        A(f"s_bitcmp1_b32 {s(sRdy)}, 0")
        A("s_cbranch_scc1 .Lkv0d")
        kv_wait('.Lkv0')
        A.label('.Lkv0')
        for x in NXT[4:]: A(x)
        for j in range(4): A(dma_txt(j))
        wait(vm=0)
        A.label('.Lkv0d')
    A(f"s_mov_b32 {s(sS1)}, 1")
    if not nokv:
        A(f"s_bitcmp1_b32 {s(sRdy)}, 1")
        A("s_cbranch_scc1 .Lkv1")
        kv_wait('.Lkv1')
    A.label('.Lkv1')
    if opt.get('stamps'):
        for q in range(4): A(f"buffer_load_dwordx4 {v(16,4)}, v0, {srd(SWS)}, {s(sDb)} offen offset:{q*1024} sc1")
        wait(vm=0)
    for x in STG + ZQ + ZACC + ADDR + NXT: A(x)
    wait(vm=0 if opt.get('tl') else 2, lgkm=0)
    if opt.get('tl'): A("s_memtime s[96:97]")
    A(f"s_mov_b32 {s(sMemRst)}, {HUGE}")
    A(f"s_cmp_eq_u32 {s(sT)}, 1")
    A(f"s_mov_b32 {s(sT)}, {HUGE}")
    if opt.get('slow'): A("s_branch .LokS")
    A("s_cbranch_scc0 .LokS")
    A("s_branch .LokF")
    sPubC = sT

    def loop(tag, st):
        out = []
        def ds(text, tg=None):
            A(text); out.append(tg)
        def dsw(tg):
            if tg not in out: return
            i = len(out) - 1 - out[::-1].index(tg)
            n = len(out) - 1 - i
            wait(lgkm=min(n, 15))
            del out[:len(out) - min(n, 15)]
        def emit(f):
            if f is None: return
            if isinstance(f, (list, tuple)):
                for x in f: emit(x)
            elif callable(f): f()
            elif f.startswith('ds_'): ds(f)
            else: A(f)
        def pop(q, n):
            for _ in range(n):
                if q: emit(q.pop(0))
        def rdf(dst, addr, off, tg): return lambda: ds(f"ds_read_b128 {v(dst,4)}, {v(addr)} offset:{off}", tg)
        def trf(dst, ad, off, tg): return lambda: ds(f"ds_read_b64_tr_b16 {v(dst,2)}, {v(ad)} offset:{off}", tg)
        def tagd(text, tg): return lambda: ds(text, tg)
        def W_(tg): return lambda: dsw(tg)
        def BAR(tg): return lambda: (dsw(tg), A("s_barrier"))
        def cv(d, x): return f"v_cvt_pk_bf16_f32 {v(d)}, {v(x)}, {v(x+1)}"
        def ror8(d, x): return f"v_mov_b32_dpp {v(d)}, {v(x)} row_ror:8 row_mask:0xf bank_mask:0xf"
        def memP():
            for u in range(2):
                A(f"buffer_load_dwordx4 {v(PR+4*u,4)}, v0, {srd(SWS)}, {s(sMemRd)} offen offset:{u*1024} sc1")
        P = {0: PR, 1: PR + 4}
        for ls in range(2, 8): P[ls] = 48 + 4 * (ls - 2)
        ACC = {'q': aQ, 'k': aK, 'v': aV}
        def X(m, ls, t): return lambda: smf(ACC[m] + 4 * t, P[ls], W[(m, ls)] + 8 * t, vIdx)
        def post(ac):
            o = []
            for t in range(2):
                for i in range(2): o.append(f"v_add_f32 {v(ac+4*t+i)}, {v(ac+4*t+i)}, {v(ac+4*t+2+i)}")
                o.append(cv(ac + t, ac + 4 * t))
            return o
        KX, QF, KF = 80, 24, 40
        S0, S1, VX, M_, VMr, BM, XP = 16, 80, 84, 96, aV, 74, 76
        OX0, OX1, OM, SUM = 32, 36, 48, 52
        AC = {0: 56, 1: 64}
        OA = [16, 80, 84, 88]
        RA, SEL = 32, 40
        np1 = opt.get('np1', 2); np2 = opt.get('np2', 2)
        NS1 = opt.get('ns1', 10)
        def gap(n):
            for _ in range(n // 4): A("s_nop 15")
            if n % 4: A(f"s_nop {4 * (n % 4) - 1}")
        def masked(f):
            if not opt.get('nomask'): A("s_mov_b64 exec, vcc")
            f()
            if not opt.get('nomask'): A("s_mov_b64 exec, -1")
        def G(f, *fill):
            f(); emit(fill)
        def run(mf, fills):
            for i, f in enumerate(mf):
                emit(fills.pop(('p', i), None))
                f()
                emit(fills.pop(i, None))
            assert not fills, fills
        def spread(fills, items, start, per=1):
            items = list(items); i = start
            while items:
                fills.setdefault(i, []).extend(items[:per]); items = items[per:]; i += 1
            return i
        def kvchk():
            if nokv: return
            A(f"s_bitcmp1_b64 {s(sRdy,2)}, {s(sS1)}")
            A(f"s_cbranch_scc0 .Lkvw{tag}")
            A.label(f".Lkvok{tag}")
        S2 = [f"v_cmp_eq_u32 {s(sRdy,2)}, {s(sK01)}, {v(vFl)}"] + STG[NS1:] + [kvchk, f"s_mov_b32 {s(sCnt)}, {s(sSpin)}"]
        S2 += ADDR + [f"s_xor_b32 {s(sPar)}, {s(sPar)}, 1", "s_mov_b64 vcc, -1"]
        if np1 > 1:
            if opt.get('h2a', 40) >= 40: S2 += [lambda: wait(vm=1)]
            else: assert opt.get('w2a', 9) <= 1 and opt['h2a'] <= len(S2)
        S2 += ZACC
        A.label(f".Ltop{tag}")
        pop(S2, opt.get('h2a', 40))
        gap(opt.get('dl2', 0))
        if opt.get('b2') == 1: A("s_barrier")
        if 'w2a' in opt: wait(vm=opt['w2a'])
        if opt.get('b2') == 2: A("s_barrier")
        if opt.get('ht'): A("s_memtime s[94:95]")
        for i in range(np2 - 1):
            memP()
            pop(S2, opt.get('h2b', 40) if i < np2 - 2 else len(S2))
            gap(opt.get('g2', 0))
            if 'w2l' in opt: wait(lgkm=0)
            if 'w2b' in opt: wait(vm=opt['w2b'])
            if opt.get('b2') == 3: A("s_barrier")
        pop(S2, len(S2))
        if opt.get('stamps') and not opt.get('ht') and 'probe' not in opt:
            g.stamp_flush(16, 17, sDb)
            A(f"s_add_u32 {s(sDb)}, {s(sDb)}, 64")
        A.label(f".Lp2{tag}")
        masked(memP)
        A(f"s_sub_u32 {s(sCnt)}, {s(sCnt)}, 1")
        A(f"s_cbranch_scc1 .Lgive{tag}")
        for x in ZQ: A(x)
        wait(vm=2 * np2 - 2, lgkm=0)
        del out[:]
        A.label(f".Lok{tag}")
        g.stamp(0)
        A(f"v_max3_u32 v16, {v(PR)}, {v(PR+1)}, {v(PR+2)}")
        A(f"v_max3_u32 v17, {v(PR+5)}, {v(PR+6)}, {v(PR+7)}")
        A(f"v_max3_u32 v16, v16, {v(PR+3)}, {v(PR+4)}")
        X('q', 0, 0)()
        ds(f"ds_write_b128 {v(vMX)}, {v(PR,4)}", 'w')
        X('q', 0, 1)()
        ds(f"ds_write_b128 {v(vMX)}, {v(PR+4,4)} offset:1024", 'w')
        A("v_max_u32 v16, v16, v17")
        A("v_cmp_eq_u32 vcc, -1, v16")
        X('q', 1, 1)()
        A(f"s_cbranch_vccnz .Lp2{tag}")
        A.label(f".Lcont{tag}")
        if opt.get('ht'): A("s_memtime s[96:97]")
        if opt.get('cnt'): A(f"s_mov_b32 s92, {s(sCnt)}")
        DM = [None if nokv else dma_txt(j) for j in range(4)]
        ard = {ls: rdf(P[ls], T0 + ls // 2 - 1, (ls % 2) * 1024, ('a', ls)) for ls in range(2, 8)}
        def zr(r, tg=None): return rdf(r, 0, ZL, tg)
        aKX, aTq, aKw2, aTk, aVX, aFl, cM1, aTo = 17, 18, 19, 20, 21, 23, 16, 16
        A(z64(aV))
        mo = [X('q', 1, 0), X('k', 0, 0), X('k', 1, 0), X('k', 0, 1), X('k', 1, 1), X('v', 0, 0), X('v', 1, 0), X('v', 0, 1), X('v', 1, 1)]
        if opt.get('b1', 3) == 3:
            F = {0: DM[0], 1: DM[1], 2: z64(aV + 2), 3: [BAR('w'), lambda: g.stamp(1), ard[2]], 4: [ard[3], z64(aV + 4)],
                 5: [f"s_mov_b64 vcc, {s(sHi,2)}", ard[4], z64(aV + 6)], 6: [ard[5], ard[6]], 7: [ard[7], f"v_lshrrev_b32 {v(aFl)}, 2, v0"],
                 8: [W_(('a', 2)), f"v_add_u32 {v(aKX)}, {s(sKXo)}, v0"]}
        else:
            F = {0: DM[0], 1: DM[1], 2: [BAR('w'), lambda: g.stamp(1), ard[2]], 3: [ard[3], z64(aV + 2)], 4: [ard[4], z64(aV + 4)],
                 5: [f"s_mov_b64 vcc, {s(sHi,2)}", ard[5], z64(aV + 6)], 6: [ard[6]], 7: [ard[7], f"v_lshrrev_b32 {v(aFl)}, 2, v0"],
                 8: [W_(('a', 2)), f"v_add_u32 {v(aKX)}, {s(sKXo)}, v0"]}
        run(mo, F)
        kx = [rdf(KX + 4 * j, aKX, (j // 2) * 4096 + (j % 2) * 1024, ('kx', j)) for j in range(8)]
        def postq(t):
            a_ = aQ + 4 * t
            return [f"v_add_f32 {v(a_+i)}, {v(a_+i)}, {v(a_+2+i)}" for i in range(2)] + [f"v_mul_f32 {v(a_+i)}, {s(sC)}, {v(a_+i)}" for i in range(2)] + [cv(aQ + t, a_)]
        pq = postq(0) + postq(1); pk = post(aK); pv = post(aV)
        kt = opt.get('kt') and not nokv
        upd = [f"s_mov_b32 {s(sMemRst)}, {s(sMemWr)}", f"s_add_u32 {s(sRing)}, {s(sRing)}, {s(s8K)}", f"s_and_b32 {s(sRing)}, {s(sRing)}, 0x6000",
               f"s_add_u32 {s(sMemWr)}, {s(sMW0)}, {s(sRing)}", f"s_add_u32 {s(sMemRd)}, {s(sMR0)}, {s(sRing)}",
               f"s_add_u32 {s(sPub)}, {s(sPub)}, {s(s8K)}", f"s_mov_b32 {s(sPubC)}, {s(sPub)}", f"s_mov_b32 {s(sCnt)}, {s(sSpin)}",
               f"s_add_u32 {s(sS1)}, {s(sS1)}, 1"] + NXT
        F = {0: DM[2],
             1: [W_(('a', 3)), kx[0], f"v_and_b32 {v(aTq)}, 0xffff, {v(vTq)}"],
             2: [kx[1], f"v_xor_b32 {v(aKw2)}, 0x84, {v(vKw)}"],
             3: [W_(('a', 7)), kx[2], f"v_lshrrev_b32 {v(aTk)}, 16, {v(vTq)}"],
             4: DM[3],
             5: [kx[3], f"v_add_u32 {v(aVX)}, {s(sVXo)}, v0"],
             6: f"buffer_store_dword {v(vPub)}, {v(vMS)}, {srd(SWS)}, {s(sPubC)} offen sc1",
             7: [kx[4], f"v_mov_b32 {v(cM1)}, -1"],
             8: f"buffer_load_dword {v(vFl)}, {v(aFl)}, {srd(SWS)}, {s(sFKV)} offen sc1",
             9: f"buffer_store_dword {v(cM1)}, {v(vMS)}, {srd(SWS)}, {s(sMemRst)} offen{st}",
             10: [kx[5], pq[0]], 11: [kx[6], pq[1]]}
        rst = F[9]
        if kt:
            upd = upd[1:5] + [f"s_xor_b32 {s(sMemRst)}, {s(sMemWr)}, 0x4000"] + upd[5:]
            F[9] = F[8]
            F[8] = f"buffer_load_dword {v(vFl)}, {v(aTo)}, {srd(SWS)}, s1 offen sc1"
            F[7] = [kx[4], f"v_lshlrev_b32 {v(aTo)}, 2, v0"]
            F[2].insert(0, f"s_add_u32 s1, {s(sS1)}, 1")
            F[5].insert(0, f"s_bitcmp1_b64 {s(sRdy,2)}, s1")
            F[6] = [f"s_cselect_b32 s1, s0, {HUGE}", F[6]]
            F[7].insert(0, f"s_add_u32 s1, s1, {s(sKV)}")
            if kt == 2: F[2], F[4] = F[4], F[2]
        qseq = [(ls, t) for ls in range(2, 5) for t in range(2)] + [(ls, t) for t in range(2) for ls in range(5, 8)]
        run([X('q', *x) for x in qseq], F)
        g.stamp(2)
        if opt.get('rt'): A("s_memrealtime s[90:91]")
        F = {}
        for i in range(8): F[i] = upd[2 * i:2 * i + 2] + [pq[2 + i]]
        assert len(upd) <= 16
        F[8] = tagd(f"ds_write2_b32 {v(vKw)}, {v(aQ)}, {v(aQ+1)} offset0:0 offset1:32", 'w')
        F[7].insert(1, kx[7])
        F[9] = [lambda: wait(vm=3 if nokv else 7), pk[0]]; F[10] = pk[1]; F[11] = pk[2]
        run([X('k', ls, t) for t in range(2) for ls in range(2, 8)], F)
        g.stamp(3)
        qf = [trf(QF + 2 * j, aTq, QT + (j // 2) * 512 + (j % 2) * 128, ('qf', j // 2)) for j in range(8)]
        kf = [trf(KF + 2 * j, aTk, KT + (j // 2) * 512 + (j % 2) * 2048, ('kf', j // 2)) for j in range(8)]
        kw = [tagd(f"ds_write2st64_b32 {v(a_)}, {v(aK)}, {v(aK+1)} offset0:{(KT-QT)//256} offset1:{(KT-QT)//256+8}", 'w') for a_ in (vKw, aKw2)]
        F = {0: [BAR('w'), qf[0]], 1: [qf[1], pk[3]], 2: [qf[2], pk[4]], 3: [qf[3], pk[5]], 4: kw[0], 5: kw[1], 6: qf[4:6], 7: qf[6:8],
             8: [zr(56), zr(60)]}
        if kt:
            F[4] = [F[4], f"v_mov_b32 {v(cM1)}, -1"]
            F[9] = rst
        B3 = opt.get('b3', 10)
        F[B3] = [BAR(('qf', 3)), kf[0]]
        nk = 1
        for i in range(B3 + 1, 12): F[i] = kf[nk:nk + 2]; nk += 2
        run([X('v', ls, t) for ls in range(2, 8) for t in range(2)], F)
        g.stamp(4)
        if opt.get('ht'):
            g.stamp_flush(16, 17, sDb)
            del out[:]
            A(f"s_add_u32 {s(sDb)}, {s(sDb)}, 64")
        def SX(tau, ks):
            d = (S0, S1)[tau]
            return lambda: mfma(d, KX + 16 * tau + 4 * ks, QF + 4 * ks, None if ks == 0 else d)
        def SMm(ks): return lambda: mfma(M_, KF + 4 * ks, QF + 4 * ks, None if ks == 0 else M_)
        x0 = lambda i: v(S0 + i)
        x1 = lambda i: v(S1 + i)
        vx = [rdf(VX, aVX, 2048, 'vx'), tagd(f"ds_read_b64 {v(VX+4,2)}, {v(aVX)} offset:{3072+8}", 'vx'), tagd(f"ds_read_b64 {v(VX+6,2)}, {v(aVX)} offset:3072", 'vx')]
        dl = kf[nk:]
        while len(dl) < 4: dl.append(None)
        dl += vx + [zr(64), zr(68)]
        vl = pv + [f"v_max3_f32 {v(T3)}, {x0(0)}, {x0(1)}, {x0(2)}", z64(BM)]
        F = {i: [dl[i] if i < len(dl) else None, vl[i]] for i in range(8)}
        F[7].insert(0, W_(('kf', 1)))
        F[8] = dl[8:]
        assert len(dl) <= 10
        cnd = [f"v_cndmask_b32 {x0(j)}, {x0(j)}, {x1(j)}, vcc" for j in range(4)]
        F[9] = [W_(('kf', 3)), f"v_max3_f32 {v(T3)}, {v(T3)}, {x0(3)}, {x1(0)}", f"v_max3_f32 {v(T3)}, {v(T3)}, {x1(1)}, {x1(2)}"]
        F[10] = [f"v_max_f32 {v(T2)}, {v(T3)}, {x1(3)}", f"v_max_f32 {v(T3)}, {v(T3)}, {x1(3)}"]
        F[11] = [W_('vx'), f"v_permlane16_swap_b32 {v(T2)}, {v(T3)}", f"v_max_f32 {v(T3)}, {v(T3)}, {v(T2)}", cnd[0], cnd[1]]
        run([SX(i // 4, i % 4) for i in range(8)] + [SMm(i) for i in range(4)], F)
        m = lambda i: v(M_ + i)
        A(f"v_max3_f32 {v(T0)}, {m(0)}, {m(1)}, {m(2)}")
        A(f"v_max3_f32 {v(T1)}, {v(T0)}, {m(3)}, {v(T3)}")
        A(f"v_max3_f32 {v(T0)}, {v(T0)}, {m(3)}, {v(T3)}")
        A(cnd[2]); A(cnd[3])
        A(f"v_permlane32_swap_b32 {v(T1)}, {v(T0)}")
        A(f"v_max_f32 {v(T0)}, {v(T0)}, {v(T1)}")
        def pks(r): return f"v_pk_add_f32 {v(r,2)}, {v(r,2)}, {v(T0,2)} op_sel_hi:[1,0] neg_lo:[0,1] neg_hi:[0,1]"
        def ex(r): return f"v_exp_f32 {v(r)}, {v(r)}"
        def msk(d, x, bm): return f"v_mov_b32_dpp {v(d)}, {v(x)} quad_perm:[0,1,2,3] row_mask:0xf bank_mask:{bm}"
        A(pks(M_))
        A(ex(M_)); A(ex(M_ + 1))
        A(pks(S0)); A(pks(S0 + 2))
        A(cv(M_, M_))
        A(ex(S0)); A(ex(S0 + 1))
        A(msk(BM, M_, '0x3')); A(msk(BM + 1, M_, '0xc'))
        A(cv(XP, S0))
        A(ex(S0 + 2)); A(ex(S0 + 3))
        A(ror8(XP + 2, XP))
        A(cv(XP + 1, S0 + 2))
        def oad(k): return f"v_bitop3_b32 {v(T0+k)}, {v(vOw)}, -9, {s(sX[k])} bitop3:0x6a"
        G(lambda: A(f"v_mfma_f32_16x16x16_bf16 {v(OM,4)}, {v(VMr,2)}, {v(BM,2)}, 0"), "s_nop 0", ror8(XP + 3, XP + 1), oad(1))
        G(lambda: mfma(SUM, CON, BM, None), oad(2), oad(3))
        stz = lambda z: [x for k in range(1, 4) for x in stage_list(('o', 1, k), z)]
        z0 = [tagd(x, 'z0') for x in stz(0)]; z1 = [tagd(x, ('z1', i // 2)) for i, x in enumerate(stz(1))]
        G(lambda: mfma(OX0, VX, XP, OM), z0[0], z0[1])
        G(lambda: mfma(OX1, VX + 4, XP, OM))
        RL, RH = SUM, SUM + 2
        A(f"v_add_f32_dpp {v(T0)}, {v(SUM)}, {v(SUM)} row_ror:8 row_mask:0xf bank_mask:0xf")
        A(f"v_rcp_f32 {v(T0)}, {v(T0)}")
        A(f"v_cndmask_b32 {v(RH)}, 0, {v(T0)}, vcc")
        A(f"v_sub_f32 {v(RL)}, {v(T0)}, {v(RH)}")
        for i in range(2): A(f"v_pk_mul_f32 {v(OX0+2*i,2)}, {v(OX0+2*i,2)}, {v(RL,2)} op_sel_hi:[1,0]")
        for i in range(2): A(f"v_pk_fma_f32 {v(OX0+2*i,2)}, {v(OX1+2*i,2)}, {v(RH,2)}, {v(OX0+2*i,2)} op_sel_hi:[1,0,1]")
        A(cv(OA[0], OX0)); A(cv(OA[0] + 1, OX0 + 2))
        ds(f"ds_write_b64 {v(vOw)}, {v(OA[0],2)}", 'w')
        A(ror8(OA[0] + 2, OA[0])); A(ror8(OA[0] + 3, OA[0] + 1))
        g.stamp(5)
        def O(u, k, z): return lambda: A(f"v_smfmac_f32_16x16x64_bf16 {v(AC[u]+4*z,4)}, {v(OA[k],4)}, {R(W[('o', u, k)]+8*z,8)}, {v(vIdx)} abid:1")
        mo = [O(0, 0, 0), O(0, 0, 1), O(1, 0, 0), O(1, 0, 1)] + [O(u, k, z) for u in range(2) for z in range(2) for k in range(1, 4)]
        def tagp(r): return f"v_bfi_b32 {v(r)}, 1, {s(sPar)}, {v(r)}"
        B4 = opt.get('b4', 1)
        F = {0: [z0[2], z0[3]], 1: [], 2: [], 3: []}
        F[B4] += [BAR('w')] + [rdf(OA[k], T0 + k, 0, ('o', k)) for k in range(1, 4)]
        F[B4 + 1] += [z0[4], z0[5]]
        F[3] += [W_(('o', 1))]
        F[4] = [W_(('o', 2)), z1[0]]; F[5] = [W_(('o', 3)), z1[1]]; F[6] = z1[2]; F[7] = z1[3]
        F[8] = [z1[4], cv(AC[0], AC[0])]; F[9] = [W_('z0'), z1[5], cv(AC[0] + 1, AC[0] + 2)]
        F[10] = tagp(AC[0]); F[11] = [rdf(SEL, 0, SELL, 'sel'), cv(AC[0] + 2, AC[0] + 4)]; F[12] = [W_(('z1', 2)), cv(AC[0] + 3, AC[0] + 6)]
        F[13] = f"buffer_store_dwordx4 {v(AC[0],4)}, {v(vPS)}, {srd(SWS)}, {s(sPartWr)} offen{st}"
        F[14] = cv(AC[1], AC[1]); F[15] = [cv(AC[1] + 1, AC[1] + 2), tagp(AC[1])]
        run(mo, F)
        A(cv(AC[1] + 2, AC[1] + 4)); A(cv(AC[1] + 3, AC[1] + 6))
        A(f"buffer_store_dwordx4 {v(AC[1],4)}, {v(vPS)}, {srd(SWS)}, {s(sPartWr)} offen offset:2048{st}")
        g.stamp(6)
        if 'probe' in opt:
            g.stamp_flush(16, 17, sDb)
            A(f"s_add_u32 {s(sDb)}, {s(sDb)}, 64")
        S1_ = STG[:NS1] + ["s_mov_b64 vcc, -1"]
        pop(S1_, opt.get('h1a', 30))
        gap(opt.get('dl1', 0))
        if opt.get('ht') == 1: A("s_memtime s[90:91]")
        PB_ = [(PR, PR + 4), (36, 44)]
        def partP(k):
            for u in range(2):
                A(f"buffer_load_dwordx4 {v(PB_[k][u],4)}, {v(vPL)}, {srd(SWS)}, {s(sPartRd)} offen offset:{u*1024} sc1")
        def red(k):
            mfma(RA, PB_[k][0], SEL, None)
            A(f"v_bitop3_b32 v16, {v(PB_[k][0])}, {v(PB_[k][1])}, {s(sPar)} bitop3:0x7e")
            A("v_and_b32 v16, 1, v16")
            mfma(RA, PB_[k][1], SEL, RA)
            A("v_cmp_ne_u32 vcc, 0, v16")
        if np1 == 1:
            pop(S1_, len(S1_))
            dsw('sel')
            if 'w1a' in opt: wait(vm=opt['w1a'])
            if opt.get('ht') == 2: A("s_memtime s[90:91]")
            A.label(f".Lp1{tag}")
            masked(lambda: partP(0))
            A(f"s_sub_u32 {s(sCnt)}, {s(sCnt)}, 1")
            A(f"s_cbranch_scc1 .Lrgive{tag}")
            wait(vm=0)
            red(0)
            A(f"s_cbranch_vccnz .Lp1{tag}")
        else:
            if 'w1a' in opt: wait(vm=opt['w1a'])
            if opt.get('ht') == 2: A("s_memtime s[90:91]")
            partP(0)
            pop(S1_, len(S1_))
            gap(opt.get('g1', 0))
            dsw('sel')
            if 'w1l' in opt: wait(lgkm=0)
            if 'w1b' in opt: wait(vm=opt['w1b'])
            A.label(f".Lp1{tag}")
            partP(1)
            wait(vm=2)
            red(0)
            A(f"s_cbranch_vccz .Lrcont{tag}")
            partP(0)
            A(f"s_sub_u32 {s(sCnt)}, {s(sCnt)}, 1")
            A(f"s_cbranch_scc1 .Lrgive{tag}")
            wait(vm=2)
            red(1)
            A(f"s_cbranch_vccnz .Lp1{tag}")
        A.label(f".Lrcont{tag}")
        if opt.get('ht'): A("s_memtime s[92:93]")
        A(f"s_cmp_lg_u32 {s(sS1)}, 64")
        A(f"v_add_f32 v16, {v(RA)}, {v(RA+1)}")
        A(f"v_add_f32 v17, {v(RA+2)}, {v(RA+3)}")
        A("v_permlane32_swap_b32 v16, v17")
        A("v_add_f32 v16, v16, v17")
        A("v_mov_b32_dpp v17, v16 row_ror:4 row_mask:0xf bank_mask:0xf")
        cvt(vPub, 16, 17)
        A(f"buffer_store_dword {v(vPub)}, {v(vMS)}, {srd(SWS)}, {s(sMemWr)} offen{st}")
        g.stamp(7)
        if opt.get('cnt'): A(f"s_mov_b32 s90, {s(sCnt)}")
        A(f"s_cbranch_scc1 .Ltop{tag}")
        A("s_branch .Lrecend")
        A.label(f".Lgive{tag}")
        A(f"s_mov_b32 {s(sSpin)}, 0")
        wait(vm=0, lgkm=0)
        A(f"s_branch .Lcont{tag}")
        A.label(f".Lrgive{tag}")
        A(f"s_mov_b32 {s(sSpin)}, 0")
        wait(vm=0)
        A(f"s_branch .Lrcont{tag}")
        if not nokv:
            A.label(f".Lkvw{tag}")
            kv_wait(f".Lkvok{tag}")

    loop('F', '')
    loop('S', ' sc1')
    A.label('.Lrecend')
    A(f"buffer_store_dword {v(vPub)}, {v(vMS)}, {srd(SWS)}, {s(sPubC)} offen sc1")
    if opt.get('dbgt'): g.ts(6, 16)
    if opt.get('tl'):
        A("s_memtime s[94:95]")
        g.ts(6, 16)
        A("s_sub_u32 s94, s94, s96")
        A("v_mov_b32 v16, s94")
        A(f"buffer_store_dword v16, off, {srd(SWS)}, s101 offset:28")
    A("s_branch .Lend")
```

```python
import sys, os
sys.path.insert(0, os.path.dirname(os.path.abspath(__file__)))
from asmlib import *

NAME = 'parallel_sum__memory_aug_recurrent_mem_tr__swiglu_ffn__prompt'

XN   = 0x0
QKV  = 0x200000
MEMG = 0x3200000
PB   = 0x4300000
NP   = 46
FLG  = 0xA000000
FKV  = FLG
FP   = FLG + 0x10000
MEMR = 0xA100000
PART = 0xA200000
DBGW = 0xA400000
WSZ  = 0xA800000
HUGE = 0x3ff00000

SX, SM0, SWQ, SWK, SWV, SWO, SWG, SWU, SWD, SOUT, SDBG, SWS = [8 + 4 * i for i in range(12)]
def srd(b): return s(b, 4)
sW, sSlot, sDead, sCnt, sXcc, sLB = 56, 57, 58, 59, 60, 61
LDS_BYTES = 163840
SPIN = 40000

DEFAULTS = dict(w1a=1, w1b=2, w2b=2, e1=2, kt=1, w2a=0, h2a=0, h1a=0)
LOG2E = 1.4426950408889634
import struct
def f2u(x): return struct.unpack('<I', struct.pack('<f', x))[0]
CSC = f2u((128 ** -0.5) * LOG2E)

class Gen:
    def __init__(self, opt):
        self.A = Asm()
        self.opt = opt
        self.role = 'p'
        self.dmap = {('p', 1): 0, ('r', 3): 5, ('r', 5): 6, ('r', 6): 7, ('b', 2): 10, ('b', 3): 11, ('b', 16): 12, ('b', 5): 13, ('b', 8): 14, ('e', 0): 15}

    def mfma(self, D, Aop, Bop, C):
        c = '0' if C is None else R(C, 4)
        self.A(f"v_mfma_f32_16x16x32_bf16 {R(D,4)}, {R(Aop,4)}, {R(Bop,4)}, {c}")
    def smf(self, D, Aop, Bop, idx):
        self.A(f"v_smfmac_f32_16x16x64_bf16 {R(D,4)}, {R(Aop,4)}, {R(Bop,8)}, {v(idx)}")
    def cvt(self, d, x, y):
        self.A(f"v_cvt_pk_bf16_f32 {v(d)}, {v(x)}, {v(y)}")
    def wait(self, vm=None, lgkm=None):
        p = []
        if vm is not None: p.append(f"vmcnt({vm})")
        if lgkm is not None: p.append(f"lgkmcnt({lgkm})")
        self.A("s_waitcnt " + " ".join(p))
    def spin_begin(self):
        A = self.A
        lp, ex = A.newlabel('spin'), A.newlabel('spinx')
        A(f"s_mov_b32 {s(sCnt)}, {SPIN}")
        A(f"s_cmp_lg_u32 {s(sDead)}, 0")
        A(f"s_cselect_b32 {s(sCnt)}, 1, {s(sCnt)}")
        A.label(lp)
        return lp, ex
    def spin_end(self, lp, ex):
        A = self.A
        A(f"s_sub_u32 {s(sCnt)}, {s(sCnt)}, 1")
        A(f"s_cmp_lg_u32 {s(sCnt)}, 0")
        A(f"s_cbranch_scc1 {lp}")
        A(f"s_mov_b32 {s(sDead)}, 1")
        A.label(ex)
    def stamp(self, idx, vt=None, ssoff=None):
        if not self.opt.get('stamps'): return
        sel = self.opt.get('sel', 0)
        if idx >= 100:
            if idx // 100 != sel: return
            idx %= 100
        if not (self.opt.get('smask', 255) >> idx) & 1: return
        self.A(f"s_memtime {s(86+2*idx,2)}")
    def stamp_flush(self, vt, vt2, ssoff):
        if not self.opt.get('stamps'): return
        A = self.A
        A("s_waitcnt lgkmcnt(0)")
        for i in range(8):
            A(f"v_writelane_b32 {v(vt)}, {s(86+2*i)}, {i}")
        A(f"v_lshrrev_b32 {v(vt2)}, 2, v0")
        A("s_mov_b64 exec, 0xff")
        A(f"buffer_store_dword {v(vt)}, {v(vt2)}, {srd(SWS)}, {s(ssoff)} offen")
        A("s_mov_b64 exec, -1")

    def ts(self, idx, vt, sidx=None):
        if self.opt.get('dbgt'):
            w = self.dmap.get((self.role, idx))
            if w is None: return
            A = self.A
            sk = A.newlabel('dt')
            if sidx is not None:
                A(f"s_cmp_lg_u32 {s(sidx)}, 0")
                A(f"s_cbranch_scc1 {sk}")
            A("s_memrealtime s[100:101]")
            A("s_waitcnt lgkmcnt(0)")
            A(f"s_mov_b32 {s(89 + w % 8)}, s100")
            A.label(sk)
            if w in (7, 15):
                sk = A.newlabel('dt')
                A(f"s_cmp_lg_u32 {s(sW)}, 0")
                A(f"s_cbranch_scc1 {sk}")
                A("s_mov_b64 exec, 1")
                A("s_not_b32 s98, s98")
                for ww, sr in ([(3, 98), (4, 89), (5, 94), (6, 95), (7, 96)] if w == 7 else [(k, 89 + k % 8) for k in range(10, 16)]):
                    A(f"v_mov_b32 {v(vt)}, {s(sr)}")
                    A(f"buffer_atomic_umax {v(vt)}, off, {srd(SDBG)}, 0 offset:{ww*4} sc1")
                A("s_mov_b64 exec, -1")
                A.label(sk)
            return
        if not self.opt.get('tl'): return
        A = self.A
        A("s_memrealtime s[100:101]")
        A("s_waitcnt lgkmcnt(0)")
        A(f"v_mov_b32 {v(vt)}, s100")
        A(f"s_lshl_b32 s101, {s(sSlot)}, 2")
        A(f"s_add_u32 s101, s101, {s(sW)}")
        A("s_lshl_b32 s101, s101, 6")
        if sidx is not None: A(f"s_add_u32 s101, s101, {s(sidx)}")
        A("s_lshl_b32 s101, s101, 2")
        A(f"s_add_u32 s101, s101, {DBGW + 0x100000}")
        A(f"buffer_store_dword {v(vt)}, off, {srd(SWS)}, s101 offset:{idx*4}")

    def prologue(self):
        A = self.A
        offs = [0, 8, 16, 24, 32, 40, 64, 72, 80, 88, 96, 104]
        sizes = [2097152, 8192, 4194304, 4194304, 4194304, 4194304, 1835008, 1835008, 1835008, 2097152, 256, WSZ]
        if self.opt.get('tl') or self.opt.get('dbgt'): A("s_memrealtime s[98:99]")
        for i, o in enumerate(offs):
            A(f"s_load_dwordx2 {s(8+4*i,2)}, s[0:1], {o}")
        A("v_lshrrev_b32 v1, 6, v0")
        A("v_and_b32 v2, 63, v0")
        A(f"s_getreg_b32 {s(sXcc)}, hwreg(HW_REG_XCC_ID)")
        A(f"v_readfirstlane_b32 {s(sW)}, v1")
        A(f"s_and_b32 {s(sXcc)}, {s(sXcc)}, 7")
        for i, z in enumerate(sizes):
            A(f"s_mov_b32 {s(10+4*i)}, {z}")
            A(f"s_mov_b32 {s(11+4*i)}, 0x20000")
        A(f"s_mov_b32 {s(sDead)}, 0")
        A(f"s_lshl_b32 {s(sLB)}, {s(sW)}, 15")
        A(f"s_add_u32 {s(sLB)}, {s(sLB)}, 0x8000")
        A("v_lshlrev_b32 v0, 4, v2")
        A("v_mov_b32 v3, 0x3ff0")
        self.wait(lgkm=0)
        skip = A.newlabel('tk')
        pf = A.newlabel('pf') if self.opt.get('pf', 0) else skip
        A(f"s_cmp_lg_u32 {s(sW)}, 0")
        A(f"s_cbranch_scc1 {pf}")
        A("s_mov_b64 exec, 1")
        A(f"s_mov_b32 s3, {s(sXcc)}")
        A("s_mov_b32 s4, 8")
        lp, got = A.newlabel('tkl'), A.newlabel('tkg')
        A.label(lp)
        A("v_mov_b32 v4, 1")
        A("s_lshl_b32 s5, s3, 5")
        A(f"buffer_atomic_add v4, off, {srd(SDBG)}, s5 sc0 sc1")
        self.wait(vm=0)
        A("v_readfirstlane_b32 s6, v4")
        A("s_add_u32 s7, s5, s6")
        A("s_cmp_lt_u32 s6, 32")
        A(f"s_cbranch_scc1 {got}")
        A("s_add_u32 s3, s3, 1")
        A("s_and_b32 s3, s3, 7")
        A("s_sub_u32 s4, s4, 1")
        A("s_cmp_lg_u32 s4, 0")
        A(f"s_cbranch_scc1 {lp}")
        A("s_mov_b32 s7, -1")
        A.label(got)
        A("v_mov_b32 v4, s7")
        A("ds_write_b32 v3, v4")
        A("s_mov_b64 exec, -1")
        self.wait(lgkm=0)
        if pf != skip:
            A(f"s_branch {skip}")
            A.label(pf)
            A(f"s_cmp_eq_u32 {s(sXcc)}, 0")
            A(f"s_cbranch_scc1 {skip}")
            A("s_lshr_b32 s3, s2, 3")
            A("s_mul_i32 s3, s3, 7")
            A(f"s_add_u32 s3, s3, {s(sXcc)}")
            A("s_mul_i32 s3, s3, 3")
            A(f"s_add_u32 s3, s3, {s(sW)}")
            A("s_sub_u32 s3, s3, 4")
            A("s_mul_i32 s3, s3, 7168")
            A("s_add_u32 s4, s3, 4096")
            for sr in (SWK, SWQ, SWV, SWO):
                for i in range(7):
                    A(f"buffer_load_dwordx4 v[124:127], v0, {srd(sr)}, {'s3' if i < 4 else 's4'} offen offset:{(i % 4) * 1024}")
        A.label(skip)
        A("s_barrier")
        A("ds_read_b32 v4, v3")
        self.wait(lgkm=0)
        A(f"v_readfirstlane_b32 {s(sSlot)}, v4")
        A(f"s_cmp_eq_u32 {s(sSlot)}, -1")
        A("s_cbranch_scc1 .Lend")
        if self.opt.get('dbgt'): self.ts(1, 4)
        if self.opt.get('tl'):
            self.ts(1, 4)
            A("v_mov_b32 v4, s98")
            A(f"buffer_store_dword v4, off, {srd(SWS)}, s101 offset:0")
        A(f"s_cmp_lt_u32 {s(sSlot)}, 32")
        A("s_cbranch_scc1 .Lrec")

    def reset_flags(self, vz, vt):
        A = self.A
        sk = A.newlabel('rf')
        A(f"s_cmp_lg_u32 {s(sW)}, 0")
        A(f"s_cbranch_scc1 {sk}")
        A(f"v_mov_b32 {v(vz)}, 0")
        A(f"v_mov_b32 {v(vz+1)}, 0")
        A(f"v_lshrrev_b32 {v(vt)}, 1, v0")
        A(f"s_lshl_b32 s3, {s(sSlot)}, 9")
        A(f"s_add_u32 s3, s3, {FLG}")
        A(f"buffer_store_dwordx2 {v(vz,2)}, {v(vt)}, {srd(SWS)}, s3 offen sc1")
        for i in range(4): A(f"v_mov_b32 {v(vz+4+i)}, -1")
        A(f"s_lshl_b32 s3, {s(sSlot)}, 11")
        A(f"s_add_u32 s3, s3, {MEMG}")
        for u in range(2):
            A(f"buffer_store_dwordx4 {v(vz+4,4)}, v0, {srd(SWS)}, s3 offen offset:{u*1024} sc1")
        A.label(sk)

    def bar1_arrive(self, vt, vm=0):
        A = self.A
        self.wait(vm=vm)
        A("s_barrier")
        sk = A.newlabel('ba')
        A(f"s_cmp_lg_u32 {s(sW)}, 0")
        A(f"s_cbranch_scc1 {sk}")
        A("s_mov_b64 exec, 1")
        A(f"v_mov_b32 {v(vt)}, 1")
        A(f"s_and_b32 s3, {s(sSlot)}, 0xe0")
        A(f"buffer_atomic_add {v(vt)}, off, {srd(SDBG)}, s3 offset:4 sc1")
        A("s_mov_b64 exec, -1")
        A.label(sk)

    def bar1_wait(self, vt, va):
        A = self.A
        A(f"v_lshrrev_b32 {v(va)}, 2, v0")
        A("s_mov_b32 s6, 0x02020202")
        A("s_mov_b32 s7, 0x02020202")
        lp, ex = self.spin_begin()
        A(f"buffer_load_dword {v(vt)}, {v(va)}, {srd(SDBG)}, 0 offen sc1")
        self.wait(vm=0)
        A(f"v_cmp_eq_u32 vcc, 32, {v(vt)}")
        A("s_and_b64 s[4:5], vcc, s[6:7]")
        A("s_cmp_eq_u64 s[4:5], s[6:7]")
        A(f"s_cbranch_scc1 {ex}")
        self.spin_end(lp, ex)

    def tr_addr(self, vt, tmp):
        A = self.A
        A(f"v_and_b32 {v(vt)}, 0xf0, v0")
        A(f"v_and_b32 {v(tmp)}, 0x300, v0")
        A(f"v_lshlrev_b32 {v(tmp)}, 1, {v(tmp)}")
        A(f"v_add3_u32 {v(vt)}, {v(vt)}, {v(tmp)}, {s(sLB)}")

    def dma_voffs(self, vq, rowmap, stride, qrows, swave_shift, tmp):
        A = self.A
        first = True
        for sb in range(4):
            db = rowmap[sb]
            if isinstance(db, tuple): continue
            A(f"v_bfe_u32 {v(tmp)}, v0, {6+sb}, 1")
            if first:
                A(f"v_lshlrev_b32 {v(vq)}, {db}, {v(tmp)}"); first = False
            else:
                A(f"v_lshl_or_b32 {v(vq)}, {v(tmp)}, {db}, {v(vq)}")
        A(f"s_mov_b32 s3, {stride}")
        A(f"v_mul_lo_u32 {v(vq)}, {v(vq)}, s3")
        for sb in range(4):
            db = rowmap[sb]
            if isinstance(db, tuple):
                A(f"v_bfe_u32 {v(tmp)}, v0, {6+sb}, 1")
                A(f"v_lshl_add_u32 {v(vq)}, {v(tmp)}, {db[1]}, {v(vq)}")
        A(f"v_and_b32 {v(tmp)}, 0x30, v0")
        A(f"s_lshl_b32 s3, {s(sW)}, {swave_shift}")
        A(f"v_add3_u32 {v(vq)}, {v(vq)}, {v(tmp)}, s3")
        for q in range(1, 4):
            A(f"v_add_u32 {v(vq+q)}, {q*(qrows*stride-1024)}, {v(vq)}")

    def load_units(self, units, vt, stage=None, after_issue=None, NS=8):
        A = self.A
        n = len(units)
        def issue(k):
            sr, vq, so, dst = units[k][:4]
            slot = k % NS
            A(f"s_add_u32 m0, {s(sLB)}, {slot*4096}")
            so()
            for q in range(4):
                A(f"buffer_load_dwordx4 {v(vq+q)}, {srd(sr)}, s3 offen offset:{q*1024} lds")
        for k in range(min(NS, n)): issue(k)
        if after_issue: after_issue()
        for k in range(n):
            sr, vq, so, dst = units[k][:4]
            va, tstep = units[k][4] if len(units[k]) > 4 else (vt, 8)
            vas = va if isinstance(va, tuple) else (va, va)
            slot = k % NS
            rem = min(NS - 1, n - 1 - k)
            self.wait(vm=4 * rem)
            base = stage[0] if isinstance(dst, tuple) else dst
            for t in range(2):
                for hh in range(2):
                    for y in range(2):
                        A(f"ds_read_b64_tr_b16 {R(base+8*t+4*hh+2*y,2)}, {v(vas[t])} offset:{slot*4096+hh*2048+y*256+t*tstep}")
            if isinstance(dst, tuple):
                self.wait(lgkm=0)
                for i in range(4):
                    A(f"ds_write_b128 {v(stage[1])}, {R(base+4*i,4)} offset:{slot*4096+i*1024}")
            if k + NS < n:
                self.wait(lgkm=0)
                issue(k + NS)
        self.wait(lgkm=0)

    def wide_voffs(self, vq, rowbits, stride, adds, tmp):
        A = self.A
        for i, db in enumerate(rowbits):
            A(f"v_bfe_u32 {v(tmp)}, v0, {6+i}, 1")
            if i == 0: A(f"v_lshlrev_b32 {v(vq)}, {db}, {v(tmp)}")
            else: A(f"v_lshl_or_b32 {v(vq)}, {v(tmp)}, {db}, {v(vq)}")
        A(f"s_mov_b32 s3, {stride}")
        A(f"v_mul_lo_u32 {v(vq)}, {v(vq)}, s3")
        A(f"v_bfe_u32 {v(tmp)}, v0, 9, 1")
        A(f"v_lshl_add_u32 {v(vq)}, {v(tmp)}, 6, {v(vq)}")
        A(f"v_and_b32 {v(tmp)}, 0x30, v0")
        A(f"s_lshr_b32 s3, {s(sW)}, 1")
        A("s_lshl_b32 s3, s3, 7")
        A(f"v_add3_u32 {v(vq)}, {v(vq)}, {v(tmp)}, s3")
        for n in range(1, 4):
            A(f"v_add_u32 {v(vq+n)}, {adds[n] - n*1024}, {v(vq)}")
    def wide_tr(self, vt, tmp):
        A = self.A
        A(f"v_and_b32 {v(vt)}, 0xf0, v0")
        A(f"v_and_b32 {v(tmp)}, 0x300, v0")
        A(f"v_lshl_or_b32 {v(vt)}, {v(tmp)}, 2, {v(vt)}")
        A(f"s_and_b32 s3, {s(sW)}, 1")
        A("s_lshl_b32 s3, s3, 9")
        A(f"v_or_b32 {v(vt)}, s3, {v(vt)}")
    def wide_issue(self, sr, vq, sb, off, half):
        A = self.A
        for hf in range(2):
            A(f"s_add_u32 m0, {s(sb)}, {off + hf*4096}")
            if hf: A(f"s_add_u32 s3, s3, {half}")
            for n in range(4):
                A(f"buffer_load_dwordx4 {v(vq+n)}, {srd(sr)}, s3 offen offset:{n*1024} lds")
    def wide_read(self, base, va, off):
        for t in range(2):
            for hh in range(2):
                for y in range(2):
                    self.A(f"ds_read_b64_tr_b16 {R(base+8*t+4*hh+2*y,2)}, {v(va)} offset:{off+hh*4096+y*256+t*8}")
    def load_wide(self, groups, vq, half, vE, after_issue=None, NS=4, late=None):
        A = self.A
        n = len(groups)
        def issue(k):
            groups[k][1]()
            self.wide_issue(groups[k][0], vq, sLB, (k % NS) * 8192, half)
        for k in range(min(NS, n)): issue(k)
        if after_issue: after_issue()
        for k in range(n):
            self.wait(vm=8 * min(NS - 1, n - 1 - k) + (5 if late and k + NS > n else 0))
            A("s_barrier")
            for e in range(2): self.wide_read(groups[k][2 + e], vE + e, (k % NS) * 8192)
            if k + NS < n:
                self.wait(lgkm=0)
                A("s_barrier")
                issue(k + NS)
            elif k + NS == n and late: late()
        self.wait(lgkm=0)

    def selector(self, vs, tmp):
        A = self.A
        A(f"v_bfe_u32 {v(tmp)}, v0, 4, 1")
        A(f"v_lshlrev_b32 {v(tmp)}, 4, {v(tmp)}")
        A(f"v_mov_b32 {v(tmp+1)}, 0x3f80")
        A(f"v_lshlrev_b32 {v(tmp+1)}, {v(tmp)}, {v(tmp+1)}")
        A(f"v_bfe_u32 {v(tmp)}, v0, 5, 2")
        for i in range(4):
            A(f"v_cmp_eq_u32 vcc, {i}, {v(tmp)}")
            A(f"v_cndmask_b32 {v(vs+i)}, 0, {v(tmp+1)}, vcc")

    def ln_load(self):
        A = self.A
        sB = 62
        A(f"s_lshl_b32 s3, {s(sB)}, 2")
        A(f"s_add_u32 s3, s3, {s(sW)}")
        A("s_lshl_b32 s4, s3, 12")
        A("v_and_b32 v4, 0xf0, v0")
        A("v_and_b32 v5, 0x300, v0")
        A("v_lshl_or_b32 v4, v5, 2, v4")
        for u in range(4):
            A(f"buffer_load_dwordx4 {v(16+4*u,4)}, v4, {srd(SX)}, s4 offen offset:{u*256}")
        A("v_bfe_u32 v6, v0, 6, 2")
        A("v_lshlrev_b32 v6, 11, v6")
        A("v_bfe_u32 v7, v0, 4, 2")
        A("v_lshl_or_b32 v6, v7, 8, v6")
        A("v_lshrrev_b32 v7, 4, v5")
        A("v_or_b32 v6, v6, v7")
        A("s_lshr_b32 s5, s3, 3")
        A("s_lshl_b32 s5, s5, 15")
        A("s_and_b32 s6, s3, 1")
        A("s_lshl_b32 s6, s6, 10")
        A("s_add_u32 s5, s5, s6")
        A("s_bfe_u32 s6, s3, 0x20001")
        A("s_lshl_b32 s6, s6, 6")
        A("s_add_u32 s5, s5, s6")
        if XN: A(f"s_add_u32 s5, s5, {XN}")

    def ln(self, vm):
        A = self.A
        sB = 62
        sk = A.newlabel('ln')
        A(f"s_cmp_ge_u32 {s(sB)}, 128")
        A(f"s_cbranch_scc1 {sk}")
        A("s_mov_b32 s6, 0xffff0000")
        self.wait(vm=vm)
        X = 32
        for i in range(16):
            A(f"v_lshlrev_b32 {v(X+2*i)}, 16, {v(16+i)}")
            A(f"v_and_b32 {v(X+2*i+1)}, s6, {v(16+i)}")
        def rowsum(r):
            for sh in (8, 4, 2, 1):
                A(f"v_add_f32_dpp {v(r)}, {v(r)}, {v(r)} row_ror:{sh} row_mask:0xf bank_mask:0xf")
        for k in range(4):
            A(f"v_add_f32 {v(8+k)}, {v(X+k)}, {v(X+4+k)}")
        for i in range(2, 8):
            for k in range(4):
                A(f"v_add_f32 {v(8+k)}, {v(8+k)}, {v(X+4*i+k)}")
        A("v_add_f32 v8, v8, v9"); A("v_add_f32 v10, v10, v11"); A("v_add_f32 v8, v8, v10")
        rowsum(8)
        A(f"v_mul_f32 v8, {1/512}, v8")
        for i in range(32):
            A(f"v_sub_f32 {v(64+i)}, {v(X+i)}, v8")
        for k in range(4):
            A(f"v_mul_f32 {v(10+k)}, {v(64+k)}, {v(64+k)}")
        for i in range(1, 8):
            for k in range(4):
                A(f"v_fmac_f32 {v(10+k)}, {v(64+4*i+k)}, {v(64+4*i+k)}")
        A("v_add_f32 v10, v10, v11"); A("v_add_f32 v12, v12, v13"); A("v_add_f32 v10, v10, v12")
        rowsum(10)
        A(f"v_mul_f32 v10, {1/512}, v10")
        self.cvt(9, 8, 10)
        A("v_lshlrev_b32 v8, 16, v9")
        A("v_and_b32 v10, s6, v9")
        A(f"v_add_f32 v10, {hex(f2u(1e-5))}, v10")
        self.cvt(10, 10, 10)
        A("v_and_b32 v10, s6, v10")
        A("v_sqrt_f32 v10, v10")
        self.cvt(10, 10, 10)
        A("v_and_b32 v10, s6, v10")
        A("v_rcp_f32 v10, v10")
        for i in range(32):
            A(f"v_sub_f32 {v(64+i)}, {v(X+i)}, v8")
        for i in range(16):
            self.cvt(16+i, 64+2*i, 64+2*i+1)
        for i in range(16):
            A(f"v_lshlrev_b32 {v(X+2*i)}, 16, {v(16+i)}")
            A(f"v_and_b32 {v(X+2*i+1)}, s6, {v(16+i)}")
        for i in range(32):
            A(f"v_mul_f32 {v(X+i)}, {v(X+i)}, v10")
        for i in range(16):
            self.cvt(16+i, X+2*i, X+2*i+1)
        for u in range(4):
            A(f"buffer_store_dwordx4 {v(16+4*u,4)}, v6, {srd(SWS)}, s5 offen sc1")
            if u < 3: A("s_add_u32 s5, s5, 8192")
        A.label(sk)

    def xn_dma(self, sseg, sbuf):
        A = self.A
        A(f"s_lshl_b32 s3, {s(sseg)}, 15")
        A(f"s_lshl_b32 s4, {s(sW)}, 13")
        A("s_add_u32 s3, s3, s4")
        A(f"s_add_u32 m0, {s(sbuf)}, s4")
        if XN: A(f"s_add_u32 s3, s3, {XN}")
        for hlf in range(2):
            for q in range(4):
                A(f"buffer_load_dwordx4 v0, {srd(SWS)}, s3 offen offset:{q*1024} sc1 lds")
            if hlf == 0:
                A("s_add_u32 m0, m0, 4096")
                A("s_add_u32 s3, s3, 4096")

    def gemm1(self, mats, vXA, XB, mid=None):
        A = self.A
        def rd(ks):
            for tau in range(2):
                A(f"ds_read_b128 {v(XB+8*(ks%4)+4*tau,4)}, {v(vXA)} offset:{ks*2048+tau*1024}")
        rd(0); rd(1); rd(2)
        for ks in range(16):
            if ks + 3 < 16: rd(ks + 3)
            left = min(3, 15 - ks)
            self.wait(lgkm=2 * left)
            for (wb, ab, tr) in mats:
                for t in range(2):
                    for tau in range(2):
                        w_ = wb + (ks // 2) * 16 + 8 * t + 4 * (ks % 2)
                        x_ = XB + 8 * (ks % 4) + 4 * tau
                        d = ab + 8 * t + 4 * tau
                        c = None if ks == 0 else d
                        if tr: self.mfma(d, w_, x_, c)
                        else: self.mfma(d, x_, w_, c)
            if mid and ks == mid[0]: mid[1]()

    def proj(self, W2, vAct, AF, ACC, PK, sP):
        A = self.A
        for ks in range(4):
            for tau in range(2):
                A(f"ds_read_b128 {v(AF+16*tau+4*ks,4)}, {v(vAct)} offset:{tau*4096+ks*1024}")
        def epi(tp):
            ab = ACC + 16 * (tp % 2)
            for tau in range(2):
                pk = PK + 8 * (tp % 2) + 4 * tau
                for t in range(2):
                    d = ab + 8 * t + 4 * tau
                    self.cvt(pk + 2 * t, d, d + 1)
                    self.cvt(pk + 2 * t + 1, d + 2, d + 3)
                A(f"s_add_u32 s3, {s(sP)}, {(tp*2+tau)*NP*1024}")
                A(f"buffer_store_dwordx4 {v(pk,4)}, v0, {srd(SWS)}, s3 offen sc1")
        for tp in range(4):
            ab = ACC + 16 * (tp % 2)
            for ks in range(4):
                if tp == 0: self.wait(lgkm=6 - 2 * ks)
                for t in range(2):
                    for tau in range(2):
                        w_ = W2 + (tp * 2 + ks // 2) * 16 + 8 * t + 4 * (ks % 2)
                        d = ab + 8 * t + 4 * tau
                        self.mfma(d, w_, AF + 16 * tau + 4 * ks, None if ks == 0 else d)
                if ks == 1 and tp > 0: epi(tp - 1)
        epi(3)

    def bulk(self):
        A = self.A
        opt = self.opt
        sB, sH, sJ, sSeg, sBuf, sNx, sFl, sP, sFb, sT = 62, 63, 64, 65, 66, 67, 68, 69, 70, 71
        ACT = 65536
        self.role = 'b'
        A(f"s_sub_u32 {s(sB)}, {s(sSlot)}, 32")
        self.ln_load()
        self.reset_flags(104, 106)
        def mlist(m):
            l = [sr for b_, sr in ((1, SWK), (2, SWV), (4, SWQ), (8, SWO)) if m & b_]
            return l[-1:] + l[:-1] if m & 16 else l
        e0, e1 = mlist(opt.get('e0', 0)), mlist(opt.get('e1', 0))
        def ltouch(srs):
            if not srs: return
            A(f"s_lshl_b32 s3, {s(sB)}, 2")
            A(f"s_add_u32 s3, s3, {s(sW)}")
            A("s_mul_i32 s3, s3, 5120")
            A("s_add_u32 s4, s3, 4096")
            for sr in srs:
                for i in range(5):
                    A(f"buffer_load_dwordx4 v[124:127], v0, {srd(sr)}, {'s3' if i < 4 else 's4'} offen offset:{(i % 4) * 1024}")
        ltouch(e0)
        def early():
            ltouch(e1)
            self.ln(0 if opt.get('nobulk') else 32 + 5 * len(e0) + 5 * len(e1))
            self.bar1_arrive(4)
            self.ts(2, 4)
        if opt.get('nobulk'):
            early()
            A("s_branch .Lend"); return
        A(f"s_mul_i32 {s(sH)}, {s(sB)}, 9363")
        A(f"s_lshr_b32 {s(sH)}, {s(sH)}, 16")
        A(f"s_mul_i32 s3, {s(sH)}, 7")
        A(f"s_sub_u32 {s(sJ)}, {s(sB)}, s3")
        vT, vq, vXA, vOne = 1, 4, 2, 3
        self.tr_addr(vT, 8)
        self.wide_voffs(100, (0, 1, 2), 8192, [8 * 8192 * n for n in range(4)], 8)
        self.wide_tr(96, 8)
        A(f"s_and_b32 s3, {s(sW)}, 2")
        A("s_lshl_b32 s3, s3, 15")
        A("s_add_u32 s3, s3, 0x8000")
        A("v_add_u32 v96, s3, v96")
        A("v_add_u32 v97, 0x8000, v96")
        A(f"s_and_b32 s3, {s(sW)}, 1")
        A("s_lshl_b32 s3, s3, 19")
        A(f"s_lshl_b32 {s(sT)}, {s(sH)}, 8")
        A(f"s_add_u32 {s(sT)}, {s(sT)}, s3")
        def wgroups(ms):
            groups = []
            for m, sr in ms:
                for u in range(0, 8, 2):
                    groups.append((sr, (lambda u=u: A(f"s_add_u32 s3, {s(sT)}, {u*64*8192}")), 128 + (m * 8 + u) * 16, 128 + (m * 8 + u + 1) * 16))
            return groups
        XB, AQ, AK, AV, PK = 16, 48, 64, 80, 104
        def phaseA(mats, flag, pre=None):
            A("s_barrier")
            A(f"s_mov_b32 {s(sSeg)}, {s(sJ)}")
            A(f"s_mov_b32 {s(sBuf)}, 0")
            self.xn_dma(sSeg, sBuf)
            A(f"v_mov_b32 {v(vXA)}, v0")
            A(f"v_mov_b32 {v(vOne)}, 1")
            A(f"s_mov_b32 {s(sFl)}, {HUGE}")
            self.wait(vm=0)
            top = A.newlabel('qkv')
            if pre:
                top1 = A.newlabel('qkv')
                A("s_barrier")
                A(f"s_add_u32 {s(sNx)}, {s(sSeg)}, 7")
                A(f"s_xor_b32 {s(sBuf)}, {s(sBuf)}, 0x8000")
                self.xn_dma(sNx, sBuf)
                pre()
                A(f"s_branch {top1}")
            A.label(top)
            self.wait(vm=2 * len(mats) + (1 if flag else 0))
            A("s_barrier")
            A(f"s_add_u32 {s(sNx)}, {s(sSeg)}, 7")
            A(f"s_xor_b32 {s(sBuf)}, {s(sBuf)}, 0x8000")
            self.xn_dma(sNx, sBuf)
            if pre: A.label(top1)
            def flagA():
                self.wait(vm=8)
                A("s_mov_b64 exec, 1")
                A(f"buffer_store_byte {v(vOne)}, off, {srd(SWS)}, {s(sFl)} sc1")
                A("s_mov_b64 exec, -1")
            self.gemm1([x[:3] for x in mats], vXA, XB, mid=(opt.get('amid', 8), flagA) if flag else None)
            A(f"s_lshl_b32 s3, {s(sH)}, 6")
            A(f"s_add_u32 s3, s3, {s(sSeg)}")
            if flag:
                A(f"s_lshl_b32 {s(sFl)}, s3, 2")
                A(f"s_add_u32 {s(sFl)}, {s(sFl)}, {s(sW)}")
                A(f"s_add_u32 {s(sFl)}, {s(sFl)}, {FKV}")
            A("s_mul_i32 s3, s3, 24576")
            A(f"s_lshl_b32 s4, {s(sW)}, 10")
            A("s_add_u32 s3, s3, s4")
            A(f"s_add_u32 s3, s3, {QKV}")
            A("s_add_u32 s4, s3, s4")
            k = 0
            for (_, ab, tr, boff) in mats:
                for o in range(2):
                    pk = PK + 4 * k; k += 1
                    for i in range(2):
                        d = ab + (8 * i + 4 * o if tr else 8 * o + 4 * i)
                        self.cvt(pk + 2 * i, d, d + 1)
                        self.cvt(pk + 2 * i + 1, d + 2, d + 3)
                    if tr:
                        A(f"s_add_u32 s5, s3, {boff + o*4096}")
                    else:
                        A(f"s_add_u32 s5, s4, {boff + o*1024}")
                    A(f"buffer_store_dwordx4 {v(pk,4)}, v0, {srd(SWS)}, s5 offen sc1")
            A(f"v_xor_b32 {v(vXA)}, 0x8000, {v(vXA)}")
            if flag and (opt.get('tl') or opt.get('dbgt')):
                A(f"s_mul_i32 s99, {s(sSeg)}, 9363")
                A("s_lshr_b32 s99, s99, 16")
                self.ts(16, 8, 99)
            A(f"s_mov_b32 {s(sSeg)}, {s(sNx)}")
            A(f"s_cmp_lt_u32 {s(sSeg)}, 64")
            A(f"s_cbranch_scc1 {top}")
            self.wait(vm=0)
            if flag:
                A("s_mov_b64 exec, 1")
                A(f"buffer_store_byte {v(vOne)}, off, {srd(SWS)}, {s(sFl)} sc1")
                A("s_mov_b64 exec, -1")
            A("s_barrier")
        def touch(sr):
            A("v_and_b32 v8, 0x300, v0")
            A("v_and_b32 v9, 0xf0, v0")
            A("v_lshl_or_b32 v9, v8, 5, v9")
            A(f"s_lshl_b32 s3, {s(sJ)}, 2")
            A(f"s_add_u32 s3, s3, {s(sW)}")
            A("s_lshl_b32 s3, s3, 15")
            A(f"s_lshl_b32 s4, {s(sH)}, 8")
            A("s_add_u32 s3, s3, s4")
            for i in range(5):
                A(f"s_add_u32 s4, s3, {i*28*32768}")
                A(f"buffer_load_dwordx4 v[124:127], v9, {srd(sr)}, s4 offen")
        tq = opt.get('tq', 1)
        self.load_wide(wgroups(((1, SWK), (2, SWV))), 100, 32 * 8192, 96, after_issue=early, late=(lambda: touch(SWQ)) if tq == 1 else (lambda: ltouch([SWQ])) if tq == 3 else None)
        self.ts(3, 8)
        self.bar1_wait(8, 9)
        self.ts(4, 8)
        phaseA([(128 + 128, AK, True, 0), (128 + 256, AV, False, 8192)], True, pre=(lambda: touch(SWQ)) if tq == 2 else None)
        self.load_wide(wgroups(((0, SWQ),)), 100, 32 * 8192, 96)
        phaseA([(128, AQ, True, 16384)], False)
        PK = 96
        self.ts(5, 8)
        if opt.get('stopA'):
            A("s_branch .Lend"); return
        A(f"s_lshr_b32 {s(sFb)}, {s(sB)}, 4")
        self.dma_voffs(vq, (0, 1, 2, 3), 3584, 16, 6, 8)
        self.dma_voffs(vq + 8, (0, 1, 2, 3), 1024, 16, 8, 8)
        A(f"s_lshl_b32 {s(sT)}, {s(sFb)}, 8")
        A(f"s_lshl_b32 {s(sNx)}, {s(sFb)}, 17")
        units = []
        for m, sr in ((0, SWG), (1, SWU)):
            for u in range(8):
                units.append((sr, vq, (lambda u=u: A(f"s_add_u32 s3, {s(sT)}, {u*64*3584}")), 128 + (m * 8 + u) * 16))
        for tp in range(4):
            for u in range(2):
                units.append((SWD, vq + 8, (lambda u=u, tp=tp: A(f"s_add_u32 s3, {s(sNx)}, {u*65536+tp*64}")), 384 + (tp * 2 + u) * 16))
        self.load_units(units, vT)
        A("s_barrier")
        self.ts(6, 8)
        A(f"s_and_b32 {s(sSeg)}, {s(sB)}, 15")
        A(f"s_lshl_b32 {s(sSeg)}, {s(sSeg)}, 2")
        A(f"s_mov_b32 {s(sBuf)}, 0")
        self.xn_dma(sSeg, sBuf)
        vAct, vActW = 4, 5
        A(f"v_mov_b32 {v(vXA)}, v0")
        A(f"v_add_u32 {v(vAct)}, {ACT}, v0")
        A(f"s_lshl_b32 s3, {s(sW)}, 10")
        A(f"v_add_u32 {v(vActW)}, s3, {v(vAct)}")
        A(f"s_mov_b32 {s(sFl)}, {HUGE}")
        self.wait(vm=0)
        AG, AU = 48, 64
        top = A.newlabel('ffn')
        A.label(top)
        self.wait(vm=9)
        A("s_barrier")
        A(f"s_add_u32 {s(sNx)}, {s(sSeg)}, 1")
        A(f"s_xor_b32 {s(sBuf)}, {s(sBuf)}, 0x8000")
        self.xn_dma(sNx, sBuf)
        def flagF():
            self.wait(vm=8)
            A("s_mov_b64 exec, 1")
            A(f"buffer_store_dword {v(vOne)}, off, {srd(SWS)}, {s(sFl)} sc1")
            A("s_mov_b64 exec, -1")
        self.gemm1([(128, AG, True), (256, AU, True)], vXA, XB, mid=(8, flagF))
        T = 80
        for i in range(16):
            A(f"v_mul_f32 {v(T+i)}, {hex(f2u(-LOG2E))}, {v(AG+i)}")
        for i in range(16):
            A(f"v_exp_f32 {v(T+i)}, {v(T+i)}")
        for i in range(16):
            A(f"v_add_f32 {v(T+i)}, 1.0, {v(T+i)}")
        for i in range(16):
            A(f"v_rcp_f32 {v(T+i)}, {v(T+i)}")
        for i in range(16):
            A(f"v_mul_f32 {v(AG+i)}, {v(AG+i)}, {v(AU+i)}")
        for i in range(16):
            A(f"v_mul_f32 {v(AG+i)}, {v(AG+i)}, {v(T+i)}")
        for tau in range(2):
            for t in range(2):
                d = AG + 8 * t + 4 * tau
                self.cvt(PK + 4 * tau + 2 * t, d, d + 1)
                self.cvt(PK + 4 * tau + 2 * t + 1, d + 2, d + 3)
            A(f"ds_write_b128 {v(vActW)}, {v(PK+4*tau,4)} offset:{tau*4096}")
        A(f"s_lshl_b32 s3, {s(sSeg)}, 2")
        A(f"s_add_u32 s3, s3, {s(sW)}")
        A(f"s_lshl_b32 {s(sFl)}, s3, 6")
        A(f"s_add_u32 {s(sFl)}, {s(sFl)}, {s(sFb)}")
        A(f"s_lshl_b32 {s(sFl)}, {s(sFl)}, 2")
        A(f"s_add_u32 {s(sFl)}, {s(sFl)}, {FP + 32*4}")
        A(f"s_mul_i32 s3, s3, {8*NP}")
        A(f"s_add_u32 s3, s3, {s(sFb)}")
        A("s_lshl_b32 s3, s3, 10")
        A(f"s_add_u32 {s(sP)}, s3, {PB + 32*1024}")
        self.wait(lgkm=0)
        A("s_barrier")
        self.proj(384, vAct, 16, 48, 96, sP)
        A(f"v_xor_b32 {v(vXA)}, 0x8000, {v(vXA)}")
        A(f"s_mov_b32 {s(sSeg)}, {s(sNx)}")
        A(f"s_and_b32 s3, {s(sSeg)}, 3")
        A("s_cmp_lg_u32 s3, 0")
        A(f"s_cbranch_scc1 {top}")
        self.wait(vm=0)
        A("s_mov_b64 exec, 1")
        A(f"buffer_store_dword {v(vOne)}, off, {srd(SWS)}, {s(sFl)} sc1")
        A("s_mov_b64 exec, -1")
        A("s_barrier")
        self.ts(7, 8)
        if opt.get('stopF'):
            A("s_branch .Lend"); return
        A(f"s_lshl_b32 {s(sNx)}, {s(sH)}, 17")
        A(f"s_lshl_b32 {s(sT)}, {s(sH)}, 8")
        self.dma_voffs(16, (2, 3, 0, 1), 8192, 128, 6, 20)
        units = []
        for m, sr in ((0, SWK), (1, SWV)):
            for ph in range(8):
                f = ph // 2 + 4 * (ph % 2)
                units.append((sr, 16, (lambda f=f: A(f"s_add_u32 s3, {s(sT)}, {f << 17}")), 128 + (m * 8 + ph) * 16))
        for tp in range(4):
            for u in range(2):
                units.append((SWO, vq + 8, (lambda u=u, tp=tp: A(f"s_add_u32 s3, {s(sNx)}, {u*65536+tp*64}")), 384 + (tp * 2 + u) * 16))
        self.load_units(units, vT)
        A("s_barrier")
        BIAS, SEL, vRL, vRL2, vOut, vFP, vIdx, vKw = 80, 88, 6, 7, 8, 9, 1, 2
        QFr, KFr, VFr, KM, VM, PF, MP, aK, aV = 16, 48, 32, 48, 64, 48, 104, 112, 120
        SX_, SM_, PX, PM, OA = 96, 104, 68, 92, 112
        TMX, TKT, TVT = 0, 8192, 12288
        sTq, sEh, sBlk, sRed = 72, 73, 74, 75
        A(f"s_and_b32 {s(sTq)}, {s(sW)}, 1")
        A(f"s_lshr_b32 {s(sEh)}, {s(sW)}, 1")
        A("v_bfe_u32 v10, v0, 6, 2")
        A("v_lshlrev_b32 v10, 3, v10")
        A("v_bfe_u32 v11, v0, 4, 2")
        A("v_add_u32 v10, v10, v11")
        A(f"s_lshl_b32 s3, {s(sTq)}, 2")
        A("v_add_u32 v12, s3, v10")
        A("v_lshrrev_b32 v11, 5, v0")
        A("v_and_b32 v11, 0x18, v11")
        A("v_sub_u32 v12, v12, v11")
        A(f"v_mov_b32 v13, {hex(f2u(-1e30))}")
        for jj in range(8):
            A(f"v_cmp_le_i32 vcc, {jj}, v12")
            A(f"v_cndmask_b32 {v(BIAS+jj)}, v13, 0, vcc")
        self.selector(SEL, 12)
        A("v_and_b32 v12, 0x300, v0")
        A("v_and_b32 v13, 0xf0, v0")
        A(f"v_lshl_or_b32 {v(vRL)}, v12, 2, v13")
        A(f"s_lshl_b32 s3, {s(sW)}, 8")
        A(f"v_add_u32 {v(vRL)}, s3, {v(vRL)}")
        A("v_mov_b32 v13, 0x200")
        A("v_cmp_gt_u32 vcc, v13, v0")
        A(f"v_mov_b32 v14, {HUGE}")
        A(f"v_cndmask_b32 {v(vRL2)}, v14, {v(vRL)}, vcc")
        A(f"s_and_b32 s3, {s(sH)}, 1")
        A("s_lshl_b32 s3, s3, 2")
        A("v_add_u32 v10, s3, v10")
        A("v_lshlrev_b32 v10, 10, v10")
        A("v_lshrrev_b32 v12, 5, v12")
        A(f"s_lshr_b32 s3, {s(sH)}, 1")
        A("s_lshl_b32 s3, s3, 6")
        A(f"s_lshl_b32 s4, {s(sW)}, 4")
        A("s_add_u32 s3, s3, s4")
        A("v_add3_u32 v10, v10, v12, s3")
        A(f"v_cndmask_b32 {v(vOut)}, v14, v10, vcc")
        A(f"v_lshrrev_b32 {v(vFP)}, 2, v0")
        for i in (1, 2):
            A(f"v_mov_b32 {v(PM+i)}, 0")
        A("v_mov_b32 v14, 0x4444")
        A("v_mov_b32 v15, 0xeeee")
        A("v_and_b32 v13, 0x20, v0")
        A("v_cmp_eq_u32 vcc, 0, v13")
        A(f"v_cndmask_b32 {v(vIdx)}, v15, v14, vcc")
        A("v_and_b32 v13, 0xf0, v0")
        A("v_lshlrev_b32 v13, 1, v13")
        A("v_bfe_u32 v14, v0, 8, 2")
        A("v_lshl_or_b32 v13, v14, 3, v13")
        A(f"s_lshl_b32 s3, {s(sW)}, 9")
        A(f"v_add_u32 {v(vKw)}, s3, v13")
        A(f"s_lshl_b32 s3, {s(sTq)}, 12")
        A(f"s_lshl_b32 s4, {s(sEh)}, 11")
        A("s_add_u32 s3, s3, s4")
        A(f"v_add_u32 {v(vActW)}, s3, {v(vAct)}")
        A(f"s_mov_b32 {s(sSeg)}, {s(sJ)}")
        self.ts(8, 10)
        top = A.newlabel('att')
        A.label(top)
        A(f"s_lshl_b32 {s(sBlk)}, {s(sH)}, 6")
        A(f"s_add_u32 {s(sBlk)}, {s(sBlk)}, {s(sSeg)}")
        A(f"s_mul_i32 s3, {s(sBlk)}, 24576")
        A(f"s_add_u32 s3, s3, {QKV}")
        A(f"s_lshl_b32 s4, {s(sTq)}, 12")
        A("s_add_u32 s4, s4, s3")
        A("s_add_u32 s4, s4, 16384")
        for ks in range(4):
            A(f"buffer_load_dwordx4 {v(QFr+4*ks,4)}, v0, {srd(SWS)}, s4 offen offset:{ks*1024} sc1")
        A("s_add_u32 s4, s3, 4096")
        for tau in range(2):
            for ks in range(4):
                A(f"buffer_load_dwordx4 {v(KFr+16*tau+4*ks,4)}, v0, {srd(SWS)}, {'s3' if tau == 0 else 's4'} offen offset:{ks*1024} sc1")
        A(f"s_lshl_b32 s4, {s(sEh)}, 12")
        A("s_add_u32 s4, s4, s3")
        A("s_add_u32 s4, s4, 8192")
        for i in range(4):
            A(f"buffer_load_dwordx4 {v(VFr+4*i,4)}, v0, {srd(SWS)}, s4 offen offset:{i*1024} sc1")
        self.wait(vm=4)
        for ks in range(4):
            for tau in range(2):
                d = SX_ + 4 * tau
                self.mfma(d, KFr + 16 * tau + 4 * ks, QFr + 4 * ks, BIAS + 4 * tau if ks == 0 else d)
        A(f"s_lshl_b32 s6, {s(sSeg)}, 13")
        A(f"s_lshl_b32 s3, {s(sW)}, 11")
        A("s_add_u32 s6, s6, s3")
        A(f"s_add_u32 s6, s6, {MEMG}")
        A("v_add_u32 v12, s3, v0")
        for i in range(8): A(f"v_mov_b64 {v(aK+2*i,2)}, 0")
        A(f"v_max3_f32 v10, {v(SX_)}, {v(SX_+1)}, {v(SX_+2)}")
        A(f"v_max3_f32 v11, {v(SX_+3)}, {v(SX_+4)}, {v(SX_+5)}")
        A(f"v_max3_f32 v10, v10, {v(SX_+6)}, {v(SX_+7)}")
        A("v_max_f32 v10, v10, v11")
        lp, ex = self.spin_begin()
        for u in range(2):
            A(f"buffer_load_dwordx4 {v(MP+4*u,4)}, v0, {srd(SWS)}, s6 offen offset:{u*1024} sc1")
        self.wait(vm=0)
        A(f"v_max3_u32 v11, {v(MP)}, {v(MP+1)}, {v(MP+2)}")
        A(f"v_max3_u32 v13, {v(MP+5)}, {v(MP+6)}, {v(MP+7)}")
        A(f"v_max3_u32 v11, v11, {v(MP+3)}, {v(MP+4)}")
        A("v_max_u32 v11, v11, v13")
        A("v_cmp_eq_u32 vcc, -1, v11")
        A(f"s_cbranch_vccz {ex}")
        self.spin_end(lp, ex)
        for u in range(2):
            A(f"ds_write_b128 v12, {v(MP+4*u,4)} offset:{TMX+u*1024}")
        if opt.get('tl'):
            A(f"s_mul_i32 s99, {s(sSeg)}, 9363")
            A("s_lshr_b32 s99, s99, 16")
            self.ts(28, 11, 99)
        A(f"v_xor_b32 v13, 12, {v(vKw)}")
        A("v_lshrrev_b32 v12, 1, v0")
        self.wait(lgkm=0)
        A("s_barrier")
        for ph in range(8):
            A(f"ds_read_b128 {v(PF+4*ph,4)}, v0 offset:{TMX+ph*1024}")
        for ph in range(8):
            self.wait(lgkm=7 - ph)
            for t in range(2): self.smf(aK + 4 * t, PF + 4 * ph, 128 + 16 * ph + 8 * t, vIdx)
        def post(ac):
            o = []
            for t in range(2):
                for i in range(2): o.append(f"v_add_f32 {v(ac+4*t+i)}, {v(ac+4*t+i)}, {v(ac+4*t+2+i)}")
                o.append(f"v_cvt_pk_bf16_f32 {v(ac+t)}, {v(ac+4*t)}, {v(ac+4*t+1)}")
            return o
        fill = [None] + post(aK) + [f"ds_write2st64_b32 {v(a_)}, {v(aK)}, {v(aK+1)} offset0:{TKT//256} offset1:{TKT//256+8}" for a_ in (vKw, 13)]
        fill += [f"s_lshl_b32 s3, {s(sW)}, 9", "v_add_u32 v13, s3, v12", f"s_lshl_b32 s3, {s(sEh)}, 10", "v_add_u32 v11, s3, v12"]
        for ph in range(8):
            for t in range(2):
                self.smf(aV + 4 * t, PF + 4 * ph, 256 + 16 * ph + 8 * t, vIdx)
                if fill:
                    x = fill.pop(0)
                    if x: A(x)
        assert not fill
        for x in post(aV): A(x)
        A(f"ds_write_b64 v13, {v(aV,2)} offset:{TVT}")
        self.wait(lgkm=0)
        A("s_barrier")
        for j in range(8):
            A(f"ds_read_b64_tr_b16 {v(KM+2*j,2)}, v12 offset:{TKT+(j//2)*512+(j%2)*2048}")
        for j in range(2):
            A(f"ds_read_b64 {v(VM+2*j,2)}, v11 offset:{TVT+j*512}")
        for ks in range(4):
            self.wait(lgkm=8 - 2 * ks)
            self.mfma(SM_, KM + 4 * ks, QFr + 4 * ks, None if ks == 0 else SM_)
        A(f"v_max3_f32 v10, v10, {v(SM_)}, {v(SM_+1)}")
        def xred(r, t, op):
            for sw in ('16', '32'):
                A(f"v_mov_b32 {v(t)}, {v(r)}")
                A(f"v_permlane{sw}_swap_b32 {v(t)}, {v(r)}")
                A(f"{op} {v(r)}, {v(r)}, {v(t)}")
        xred(10, 11, 'v_max_f32')
        A(f"s_mov_b32 s3, {hex(CSC)}")
        A("v_mul_f32 v10, s3, v10")
        for i in range(10):
            A(f"v_fma_f32 {v(SX_+i)}, {v(SX_+i)}, s3, -v10")
        for i in range(10):
            A(f"v_exp_f32 {v(SX_+i)}, {v(SX_+i)}")
        for i in range(4):
            self.cvt(PX + i, SX_ + 2 * i, SX_ + 2 * i + 1)
        self.cvt(PM, SM_, SM_ + 1)
        self.cvt(PM + 3, SM_, SM_ + 1)
        self.wait(lgkm=0)
        for i in range(4):
            self.mfma(OA + 4 * i, VFr + 4 * i, PX, None)
        for i in range(4):
            A(f"v_mfma_f32_16x16x16_bf16 {v(OA+4*i,4)}, {v(VM+2*(i//2),2)}, {v(PM+2*(i%2),2)}, {v(OA+4*i,4)}")
        A(f"v_add_f32 v11, {v(SM_)}, {v(SM_+1)}")
        A(f"v_add_f32 v11, v11, {v(SX_)}")
        for i in range(1, 8):
            A(f"v_add_f32 v11, v11, {v(SX_+i)}")
        xred(11, 12, 'v_add_f32')
        A("v_rcp_f32 v11, v11")
        for i in range(16):
            A(f"v_mul_f32 {v(OA+i)}, {v(OA+i)}, v11")
        for k2 in range(2):
            for i in range(4):
                self.cvt(PK + 4 * k2 + i, OA + 8 * k2 + 2 * i, OA + 8 * k2 + 2 * i + 1)
            A(f"ds_write_b128 {v(vActW)}, {v(PK+4*k2,4)} offset:{k2*1024}")
        A(f"s_lshl_b32 s3, {s(sSeg)}, 2")
        A(f"s_add_u32 s3, s3, {s(sW)}")
        A(f"s_lshl_b32 {s(sFl)}, s3, 6")
        A(f"s_add_u32 {s(sFl)}, {s(sFl)}, {s(sH)}")
        A(f"s_lshl_b32 {s(sFl)}, {s(sFl)}, 2")
        A(f"s_add_u32 {s(sFl)}, {s(sFl)}, {FP}")
        A(f"s_mul_i32 s3, s3, {8*NP}")
        A(f"s_add_u32 s3, s3, {s(sH)}")
        A("s_lshl_b32 s3, s3, 10")
        A(f"s_add_u32 {s(sP)}, s3, {PB}")
        self.wait(lgkm=0)
        A("s_barrier")
        self.proj(384, vAct, 16, 48, 96, sP)
        A(f"s_lshl_b32 {s(sRed)}, {s(sSeg)}, 15")
        A(f"buffer_load_dwordx2 {v(14,2)}, {v(vOut)}, {srd(SX)}, {s(sRed)} offen")
        self.wait(vm=1)
        A("s_mov_b64 exec, 1")
        A(f"buffer_store_dword {v(vOne)}, off, {srd(SWS)}, {s(sFl)} sc1")
        A("s_mov_b64 exec, -1")
        A("s_barrier")
        self.ts(40, 10, 99)
        A(f"s_lshl_b32 s6, {s(sSeg)}, 2")
        A(f"s_lshr_b32 s3, {s(sH)}, 3")
        A("s_add_u32 s6, s6, s3")
        A("s_lshl_b32 s6, s6, 8")
        A(f"s_add_u32 s6, s6, {FP}")
        lp, ex = self.spin_begin()
        A(f"buffer_load_dword v10, {v(vFP)}, {srd(SWS)}, s6 offen sc1")
        self.wait(vm=0)
        A("v_cmp_eq_u32 vcc, 1, v10")
        A(f"s_and_b32 s5, vcc_hi, {(1 << (NP-32)) - 1}")
        A(f"s_xor_b32 s5, s5, {(1 << (NP-32)) - 1}")
        A("s_not_b32 s4, vcc_lo")
        A("s_or_b32 s4, s4, s5")
        A(f"s_cbranch_scc0 {ex}")
        self.spin_end(lp, ex)
        A(f"s_lshl_b32 s3, {s(sSeg)}, 5")
        A(f"s_add_u32 s3, s3, {s(sH)}")
        A(f"s_mul_i32 s3, s3, {NP*1024}")
        A(f"s_add_u32 s3, s3, {PB}")
        RD = 16
        for u in range(12):
            A(f"buffer_load_dwordx4 {v(RD+4*u,4)}, {v(vRL if u < 11 else vRL2)}, {srd(SWS)}, s3 offen sc1")
            if u < 11: A("s_add_u32 s3, s3, 4096")
        RA, RB = 64, 68
        for u in range(12):
            self.wait(vm=11 - u)
            d = RA if u < 8 else RB
            self.mfma(d, SEL, RD + 4 * u, None if u in (0, 8) else d)
        A("s_mov_b32 s6, 0xffff0000")
        A("v_lshlrev_b32 v72, 16, v14"); A("v_and_b32 v73, s6, v14")
        A("v_lshlrev_b32 v74, 16, v15"); A("v_and_b32 v75, s6, v15")
        def rnd4(b, t):
            self.cvt(t, b, b + 1); self.cvt(t + 1, b + 2, b + 3)
            A(f"v_lshlrev_b32 {v(b)}, 16, {v(t)}"); A(f"v_and_b32 {v(b+1)}, s6, {v(t)}")
            A(f"v_lshlrev_b32 {v(b+2)}, 16, {v(t+1)}"); A(f"v_and_b32 {v(b+3)}, s6, {v(t+1)}")
        rnd4(RA, 10)
        for i in range(4): A(f"v_add_f32 {v(72+i)}, {v(72+i)}, {v(RA+i)}")
        rnd4(72, 10)
        rnd4(RB, 12)
        for i in range(4): A(f"v_add_f32 {v(72+i)}, {v(72+i)}, {v(RB+i)}")
        self.cvt(10, 72, 73); self.cvt(11, 74, 75)
        A(f"buffer_store_dwordx2 {v(10,2)}, {v(vOut)}, {srd(SOUT)}, {s(sRed)} offen")
        self.ts(52, 10, 99)
        A(f"s_add_u32 {s(sSeg)}, {s(sSeg)}, 7")
        A(f"s_cmp_lt_u32 {s(sSeg)}, 64")
        A(f"s_cbranch_scc1 {top}")
        self.role = 'e'
        if opt.get('dbgt'):
            self.wait(vm=0)
            self.ts(0, 10)
        A("s_branch .Lend")

    def rec(self):
        A = self.A
        A.label('.Lrec')
        self.role = 'r'
        self.reset_flags(4, 6)
        if self.opt.get('norec'):
            self.bar1_arrive(4)
            A("s_branch .Lend"); return
        from rec import emit_rec
        emit_rec(self)

    def build(self):
        A = self.A
        self.prologue()
        self.bulk()
        self.rec()
        A.label('.Lend')
        A("s_endpgm")
        if 'probe' in self.opt:
            i0 = A.lines.index('.LcontF:')
            idx = [i for i in range(i0, len(A.lines)) if not A.lines[i].endswith(':') and not A.lines[i].startswith('s_memtime')]
            A.lines.insert(idx[self.opt['probe']], 's_memtime s[90:91]')
        body = A.finalize(timed=not self.opt.get('untimed'))
        ref = open(os.path.join(os.path.dirname(os.path.abspath(__file__)), '..', 'cdna_kernels', NAME + '.s.ref')).read()
        head = []
        for l in ref.split('\n'):
            if l.startswith('; @launch'):
                head.append(f'; @launch grid=(256,1,1) block=(256,1,1) lds={LDS_BYTES}')
            elif l.startswith(';') or l.startswith('.'):
                head.append(l)
            else:
                break
        tail = f"""
.section .rodata,"a"
.p2align 6
.amdhsa_kernel {NAME}_kernel
  .amdhsa_next_free_vgpr 512
  .amdhsa_next_free_sgpr 102
  .amdhsa_accum_offset 256
  .amdhsa_group_segment_fixed_size 0
  .amdhsa_kernarg_size 112
  .amdhsa_user_sgpr_count 2
  .amdhsa_user_sgpr_kernarg_segment_ptr 1
  .amdhsa_system_sgpr_workgroup_id_x 1
.end_amdhsa_kernel
"""
        return '\n'.join(head) + f'\n{NAME}_kernel:\n' + body + tail

if __name__ == '__main__':
    opt = {}
    out = None
    for a_ in sys.argv[1:]:
        if a_.startswith('-o'): out = a_[2:]
        elif '=' in a_:
            k, x = a_.split('='); opt[k] = int(x, 0)
        else: opt[a_] = 1
    for k, x in DEFAULTS.items(): opt.setdefault(k, x)
    opt = {k: x for k, x in opt.items() if x != -1}
    sys.modules['gen'] = sys.modules['__main__']
    txt = Gen(opt).build()
    if out is None:
        out = os.path.join(os.path.dirname(os.path.abspath(__file__)), '..', 'cdna_kernels', NAME + '.s')
    open(out, 'w').write(txt)
    print('wrote', out, len(txt), 'bytes')
```
